```python
import torch

def _softmax(x, axis=-1):
    return torch.softmax(x, dim=axis)
def _gelu(x):
    return torch.nn.functional.gelu(x, approximate="tanh")
def _silu(x):
    return torch.nn.functional.silu(x)
def _sigmoid(x):
    return torch.sigmoid(x)
def _layernorm(x, axis=-1, eps=1e-5):
    m = x.mean(dim=axis, keepdim=True)
    v = x.var(dim=axis, keepdim=True, unbiased=False)
    return (x - m) / torch.sqrt(v + eps)
def _scatter_add(tgt, idx, src, axis=0):
    return tgt.clone().index_add_(axis, idx, src)
def _segment_sum(src, seg, n):
    out = torch.zeros((n,) + src.shape[1:], dtype=src.dtype)
    return out.index_add_(0, seg, src)
def _pad(x, pw):
    flat = tuple(v for pair in reversed(pw) for v in pair)
    return torch.nn.functional.pad(x, flat)

kernel_name = 'gated_mix__gqa_block_cached__moe_arch_mod__decode'

def setup_inputs():

    _w = (lambda a: (lambda t: t.to(torch.bfloat16) if t.is_floating_point() else t)(torch.as_tensor(a)))
    def _A_setup():
        B, Sq, D = 1, 1, 1024
        Hq, Hkv, Sk, Dh = 32, 4, 65536, 128
        assert Hq % Hkv == 0, (Hq, Hkv)
        return {
            "x": _w((lambda *s: torch.randn(*s, dtype=torch.bfloat16) * 0.05)(B, Sq, D)),
            "k_cache": _w((lambda *s: torch.randn(*s, dtype=torch.bfloat16) * 3.2)(B, Hkv, Sk, Dh)),
            "v_cache": _w((lambda *s: torch.randn(*s, dtype=torch.bfloat16) * 1.6)(B, Hkv, Sk, Dh)),
            "wq": _w((lambda *s: torch.randn(*s, dtype=torch.bfloat16) * 3.2)(D, Hq * Dh) * (D ** -0.5)),
            "wo": _w((lambda *s: torch.randn(*s, dtype=torch.bfloat16) * 1.6)(Hq * Dh, D) * ((Hq * Dh) ** -0.5)),
        }
    _A_in = _A_setup()

    def _B_setup():
        B, S, D, F, C = 1, 1, 1024, 3584, 1
        return {
            "x": _w((lambda *s: torch.randn(*s, dtype=torch.bfloat16) * 0.05)(B, S, D)),
            "w_r": _w((lambda *s: torch.randn(*s, dtype=torch.bfloat16) * 0.05)(D)),
            "w_gate": _w((lambda *s: torch.randn(*s, dtype=torch.bfloat16) * 0.05)(D, F)),
            "w_up": _w((lambda *s: torch.randn(*s, dtype=torch.bfloat16) * 0.05)(D, F)),
            "w_down": _w((lambda *s: torch.randn(*s, dtype=torch.bfloat16) * 0.05)(F, D)),
        }
    _B_in = _B_setup()

    return {
        "A_x": _A_in["x"],
        "A_k_cache": _A_in["k_cache"],
        "A_v_cache": _A_in["v_cache"],
        "A_wq": _A_in["wq"],
        "A_wo": _A_in["wo"],
        "B_x": _B_in["x"],
        "B_w_r": _B_in["w_r"],
        "B_w_gate": _B_in["w_gate"],
        "B_w_up": _B_in["w_up"],
        "B_w_down": _B_in["w_down"],
        "gate_w": _w((lambda *s: torch.randn(*s, dtype=torch.bfloat16) * 0.05)(1024) * 16.0),
    }

def reference(A_x, A_k_cache, A_v_cache, A_wq, A_wo, B_x, B_w_r, B_w_gate, B_w_up, B_w_down, gate_w):
    def _A_ref(x, k_cache, v_cache, wq, wo):
        B, Sq, D = x.shape
        Hq, Dh = 32, 128
        Hkv = k_cache.shape[1]
        rep = Hq // Hkv
        q = (lambda x, *d: x.permute(*d))((x @ wq).reshape(B, Sq, Hq, Dh), 0, 2, 1, 3)
        k = (lambda x, n, axis: torch.repeat_interleave(x, n, dim=axis))(k_cache, rep, axis=1)
        v = (lambda x, n, axis: torch.repeat_interleave(x, n, dim=axis))(v_cache, rep, axis=1)
        scores = torch.einsum("bhqd,bhkd->bhqk", q, k) * (Dh ** -0.5)
        p = _softmax(scores, axis=-1)
        o = torch.einsum("bhqk,bhkd->bhqd", p, v)
        return (lambda x, *d: x.permute(*d))(o, 0, 2, 1, 3).reshape(B, Sq, Hq * Dh) @ wo

    def _B_ref(x, w_r, w_gate, w_up, w_down):
        B, S, D = x.shape
        C = 1
        r = x @ w_r
        idx = torch.argsort(-r, axis=-1)[:, :C]
        idx_e = (lambda x, n, axis: torch.repeat_interleave(x, n, dim=axis))(idx.reshape(B, C, 1), D, axis=2)
        x_sel = (lambda x, i, axis: torch.take_along_dim(x, i, dim=axis))(x, idx_e, axis=1)
        g = _silu(x_sel @ w_gate)
        u = x_sel @ w_up
        y = (g * u) @ w_down
        r_sel = _sigmoid((lambda x, i, axis: torch.take_along_dim(x, i, dim=axis))(r, idx, axis=1))
        y = y * r_sel.reshape(B, C, 1)
        b_off = (torch.arange(B) * S).reshape(B, 1)
        flat_idx = (idx + b_off).reshape(B * C)
        zero = (x * 0.0).reshape(B * S, D)
        upd = _scatter_add(zero, flat_idx, y.reshape(B * C, D), axis=0)
        return x + upd.reshape(B, S, D)

    x = A_x
    g = _sigmoid((x * gate_w).sum(-1, keepdims=True))
    a = _A_ref(x, A_k_cache, A_v_cache, A_wq, A_wo)
    b = _B_ref(x, B_w_r, B_w_gate, B_w_up, B_w_down)
    return g * a + (1 - g) * b
```

```python
import re

TRANS = ("v_exp_f32", "v_log_f32", "v_rcp_f32", "v_rsq_f32", "v_sqrt_f32", "v_sin_f32", "v_cos_f32")

def regs_of(tok):
    tok = tok.strip()
    tok = tok.lstrip('-').strip('|')
    m = re.fullmatch(r'([vsa])\[(\d+):(\d+)\]', tok)
    if m:
        return {(m.group(1), i) for i in range(int(m.group(2)), int(m.group(3)) + 1)}
    m = re.fullmatch(r'([vsa])(\d+)', tok)
    if m:
        return {(m.group(1), int(m.group(2)))}
    if tok in ('vcc', 'vcc_lo', 'vcc_hi'):
        return {('vcc', 0)}
    if tok in ('exec', 'exec_lo', 'exec_hi'):
        return {('exec', 0)}
    if tok == 'm0':
        return {('m0', 0)}
    return set()

class Ins:
    __slots__ = ('text', 'op', 'kind', 'rd', 'wr', 'dpp', 'srcc', 'wide_data', 'states')

def parse(text):
    t = text.split(';')[0].strip()
    parts = t.split(None, 1)
    op = parts[0]
    rest = parts[1] if len(parts) > 1 else ''
    ops = [o.strip() for o in rest.split(',')] if rest else []
    last_mods = []
    if ops:
        sp = ops[-1].split()
        ops[-1] = sp[0] if sp else ''
        last_mods = sp[1:]
    I = Ins()
    I.text = text; I.op = op; I.rd = set(); I.wr = set(); I.dpp = False; I.srcc = set(); I.wide_data = set()
    I.states = 1
    mods = ' '.join(last_mods)
    if op == 's_nop':
        I.kind = 'nop'; I.states = int(ops[0], 0) + 1
        return I
    if op.startswith('v_mfma'):
        I.kind = 'mfma'
        I.wr = regs_of(ops[0])
        I.rd = regs_of(ops[1]) | regs_of(ops[2]) | regs_of(ops[3])
        I.srcc = regs_of(ops[3])
        return I
    if op.startswith('v_'):
        I.kind = 'valu'
        if 'dpp' in op or 'row_' in mods or 'quad_perm' in mods:
            I.dpp = True
        if op.startswith('v_permlane') and 'swap' in op:
            I.rd = regs_of(ops[0]) | regs_of(ops[1]); I.wr = set(I.rd)
            return I
        if op.startswith('v_cmpx'):
            I.wr = {('exec', 0)} | regs_of(ops[0])
            for o in ops[1:]: I.rd |= regs_of(o)
            return I
        I.wr = regs_of(ops[0])
        start = 1
        if op.startswith(('v_add_co', 'v_addc_co', 'v_sub_co', 'v_subb_co')):
            I.wr |= regs_of(ops[1]); start = 2
        for o in ops[start:]: I.rd |= regs_of(o)
        if op.startswith(('v_fmac', 'v_mac', 'v_dot2c')):
            I.rd |= regs_of(ops[0])
        if op.startswith('v_cndmask') and len(ops) == 3:
            I.rd |= {('vcc', 0)}
        return I
    if op.startswith(('buffer_', 'global_')):
        I.kind = 'vmem'
        if 'load' in op and 'lds' not in mods.split():
            I.wr = regs_of(ops[0])
            for o in ops[1:]: I.rd |= regs_of(o)
        else:
            for o in ops: I.rd |= regs_of(o)
            if 'x4' in op or 'x3' in op:
                I.wide_data = regs_of(ops[0]) if op.startswith('buffer_') else regs_of(ops[1])
        return I
    if op.startswith('ds_'):
        I.kind = 'ds'
        if 'read' in op or 'permute' in op or 'swizzle' in op or '_rtn' in op:
            I.wr = regs_of(ops[0])
            for o in ops[1:]: I.rd |= regs_of(o)
        else:
            for o in ops: I.rd |= regs_of(o)
        return I
    if op.startswith('s_'):
        I.kind = 'salu'
        if op.startswith(('s_cmp', 's_cbranch', 's_branch', 's_waitcnt', 's_barrier', 's_endpgm', 's_setprio', 's_sleep')):
            for o in ops: I.rd |= regs_of(o)
        else:
            if ops: I.wr = regs_of(ops[0])
            for o in ops[1:]: I.rd |= regs_of(o)
            if 'saveexec' in op: I.wr |= {('exec', 0)}
        return I
    I.kind = 'other'
    return I

def need(prev, cur):
    n = 0
    vw = {r for r in prev.wr if r[0] in 'va'}
    sw = {r for r in prev.wr if r[0] in ('s', 'vcc')}
    if prev.kind == 'valu':
        if prev.op.startswith('v_dot') and vw & (cur.rd | cur.wr):
            if not (cur.op == prev.op and cur.wr == prev.wr): n = max(n, 3)
        if cur.kind == 'mfma' and vw & cur.rd: n = max(n, 2)
        if cur.kind == 'valu':
            if cur.dpp and vw & cur.rd: n = max(n, 2)
            if cur.op.startswith('v_permlane') and vw & cur.rd: n = max(n, 2)
            if cur.op.startswith(('v_readfirstlane', 'v_readlane')) and vw & cur.rd: n = max(n, 1)
            if prev.op.startswith(TRANS) and vw & cur.rd: n = max(n, 1)
            if sw & cur.rd: n = max(n, 2)
            if cur.op.startswith(('v_readlane', 'v_writelane')) and sw & cur.rd: n = max(n, 4)
        if cur.kind == 'vmem' and sw & cur.rd: n = max(n, 5)
        if ('exec', 0) in prev.wr:
            if cur.kind == 'mfma': n = max(n, 4)
            if cur.kind == 'valu' and cur.dpp: n = max(n, 5)
            if cur.kind == 'valu' and cur.op.startswith(('v_permlane', 'v_readlane', 'v_readfirstlane', 'v_writelane')): n = max(n, 4)
        if prev.op.startswith(TRANS) and cur.kind in ('mfma', 'vmem', 'ds') and vw & cur.rd: n = max(n, 2)
    if prev.kind == 'mfma':
        D = prev.wr
        if cur.kind == 'mfma':
            ab = cur.rd - cur.srcc
            if D & ab: n = max(n, 8)
            if D & cur.srcc and D != cur.srcc: n = max(n, 6)
            if D & cur.wr and D != cur.srcc: n = max(n, 8)
        elif cur.kind in ('valu', 'vmem', 'ds'):
            if D & (cur.rd | cur.wr): n = max(n, 8)
            if cur.kind == 'valu' and prev.srcc & cur.wr: n = max(n, 3)
    if prev.kind == 'vmem' and prev.wide_data:
        if prev.wide_data & cur.wr:
            n = max(n, 2 if cur.kind == 'valu' else 1)
    if prev.kind == 'salu' and ('m0', 0) in prev.wr and cur.kind == 'vmem': n = max(n, 1)
    return n

class Asm:
    def __init__(self):
        self.lines = []
        self.hist = []
        self.vm = []
        self.maxv = 0
        self.maxs = 0
    def raw(self, s):
        self.lines.append(s)
    def label(self, s):
        self.lines.append(s + ':')
    def comment(self, s):
        self.lines.append('    ; ' + s)
    def E(self, s, tag=None):
        I = parse(s)
        dist = 0
        pad = 0
        for p in reversed(self.hist):
            req = need(p, I)
            if req > dist: pad = max(pad, req - dist)
            dist += p.states
            if dist >= 12: break
        while pad > 0:
            k = min(pad, 8)
            J = parse('s_nop %d' % (k - 1))
            self.lines.append('    s_nop %d' % (k - 1))
            self.hist.append(J)
            pad -= k
        self.lines.append('    ' + s)
        self.hist.append(I)
        if len(self.hist) > 24: self.hist = self.hist[-24:]
        for r in I.rd | I.wr:
            if r[0] == 'v': self.maxv = max(self.maxv, r[1] + 1)
            if r[0] == 's': self.maxs = max(self.maxs, r[1] + 1)
        if I.kind == 'vmem':
            self.vm.append(tag)
        return I
    def wait_vm(self, tag):
        idx = [i for i, t in enumerate(self.vm) if t == tag]
        if not idx: return
        last = idx[-1]
        n = len(self.vm) - 1 - last
        assert n <= 63, n
        self.E('s_waitcnt vmcnt(%d)' % n)
        self.vm = self.vm[last + 1:]
    def wait_vm_all(self):
        self.E('s_waitcnt vmcnt(0)')
        self.vm = []
    def flush_hist(self):
        self.E('s_nop 7'); self.E('s_nop 3')
    def text(self):
        return '\n'.join(self.lines) + '\n'
```

```python
import sys
sys.path.insert(0, 'gen')
from asmlib import Asm

NAME = 'gated_mix__gqa_block_cached__moe_arch_mod__decode'
SX, SK, SV, SWQ, SWO, SWR, SWG, SWU, SWD, SGW, SOUT, SDBG, SWS = 8, 12, 16, 20, 24, 28, 32, 36, 40, 44, 48, 52, 56
KARG = {SX: (0, 2048), SK: (8, 0x4000000), SV: (16, 0x4000000), SWQ: (24, 0x800000), SWO: (32, 0x800000),
        SWR: (48, 2048), SWG: (56, 0x700000), SWU: (64, 0x700000), SWD: (72, 0x700000), SGW: (80, 2048),
        SOUT: (88, 2048), SDBG: (96, 256), SWS: (104, 0x10000000)}
QP = 0x0
GU = 0x10000
AP = 0x40000
ML = 0x140000
ZP = 0x180000
CEXP = 0.08838834764831845 * 1.4426950408889634
LOG2E = 1.4426950408889634

import struct
def f2h(x):
    return '0x%08x' % struct.unpack('<I', struct.pack('<f', x))[0]

def srd(b): return 's[%d:%d]' % (b, b + 3)
def vr(a, n=1): return 'v%d' % a if n == 1 else 'v[%d:%d]' % (a, a + n - 1)

def prologue(A, name, nwg, bufs):
    A.raw('.p2align 8')
    A.raw('.globl %s' % name)
    A.raw('.type %s,@function' % name)
    A.label(name)
    A.hist = []; A.vm = []; A.maxv = 1; A.maxs = 3
    A.E('s_cmp_ge_u32 s2, %d' % nwg)
    A.E('s_cbranch_scc1 %s_end' % name)
    for b in bufs:
        A.E('s_load_dwordx2 s[%d:%d], s[0:1], %d' % (b, b + 1, KARG[b][0]))
    for b in bufs:
        A.E('s_mov_b32 s%d, 0x%x' % (b + 2, KARG[b][1]))
        A.E('s_mov_b32 s%d, 0x00020000' % (b + 3))

def srd_ready(A, bufs):
    A.E('s_waitcnt lgkmcnt(0)')
    for b in bufs:
        A.E('s_and_b32 s%d, s%d, 0xffff' % (b + 1, b + 1))

def epilogue(A, name, descs):
    A.label(name + '_end')
    A.E('s_endpgm')
    descs.append((name, A.maxv, A.maxs))

def gemv_acc(A, acc, w, xs, tmp, first=True):
    for i, wb in enumerate(w):
        for e in range(4):
            A.E('v_lshlrev_b32 v%d, 16, v%d' % (tmp, wb + e))
            A.E('v_and_b32 v%d, 0xffff0000, v%d' % (tmp + 1, wb + e))
            if first and i == 0:
                A.E('v_mul_f32 v%d, v%d, %s' % (acc + 2 * e, tmp, xs[i]))
                A.E('v_mul_f32 v%d, v%d, %s' % (acc + 2 * e + 1, tmp + 1, xs[i]))
            else:
                A.E('v_fmac_f32 v%d, v%d, %s' % (acc + 2 * e, tmp, xs[i]))
                A.E('v_fmac_f32 v%d, v%d, %s' % (acc + 2 * e + 1, tmp + 1, xs[i]))

def reduce8_rows(A, acc):
    for e in range(4):
        A.E('v_permlane32_swap_b32 v%d, v%d' % (acc + e, acc + e + 4))
    for e in range(4):
        A.E('v_add_f32 v%d, v%d, v%d' % (acc + e, acc + e, acc + e + 4))
    for e in range(2):
        A.E('v_permlane16_swap_b32 v%d, v%d' % (acc + e, acc + e + 2))
    for e in range(2):
        A.E('v_add_f32 v%d, v%d, v%d' % (acc + e, acc + e, acc + e + 2))

def xlane(A, op, r, tmp, bits):
    for b in bits:
        if b < 4:
            if b == 0: mod = 'quad_perm:[1,0,3,2]'
            elif b == 1: mod = 'quad_perm:[2,3,0,1]'
            elif b == 2: mod = 'row_ror:4'
            else: mod = 'row_ror:8'
            A.E('%s_dpp v%d, v%d, v%d %s row_mask:0xf bank_mask:0xf' % (op, r, r, r, mod))
        else:
            A.E('v_mov_b32 v%d, v%d' % (tmp, r))
            A.E('v_permlane%d_swap_b32 v%d, v%d' % (16 if b == 4 else 32, r, tmp))
            A.E('%s v%d, v%d, v%d' % (op, r, r, tmp))

def bf16r(A, r):
    A.E('v_cvt_pk_bf16_f32 v%d, v%d, v%d' % (r, r, r))
    A.E('v_lshlrev_b32 v%d, 16, v%d' % (r, r))

def sigmoid(A, dst, src):
    A.E('v_mul_f32 v%d, %s, v%d' % (dst, f2h(-LOG2E), src))
    A.E('v_exp_f32 v%d, v%d' % (dst, dst))
    A.E('v_add_f32 v%d, 1.0, v%d' % (dst, dst))
    A.E('v_rcp_f32 v%d, v%d' % (dst, dst))

def k1(A, descs):
    name = 'k1_kernel'
    bufs = [SX, SWQ, SWG, SWU, SWS]
    prologue(A, name, 256, bufs)
    E = A.E
    E('v_lshrrev_b32 v1, 6, v0')
    E('v_and_b32 v2, 63, v0')
    E('v_readfirstlane_b32 s60, v1')
    E('v_lshrrev_b32 v3, 3, v2')
    E('v_and_b32 v4, 7, v2')
    E('s_lshr_b32 s61, s2, 6')
    E('s_and_b32 s62, s2, 15')
    E('s_lshl_b32 s63, s61, 4')
    E('s_add_u32 s62, s62, s63')
    E('s_bfe_u32 s63, s2, 0x20004')
    E('s_lshl_b32 s64, s63, 8')
    E('s_lshl_b32 s65, s60, 5')
    E('s_add_u32 s64, s64, s65')
    E('v_lshlrev_b32 v5, 2, v3')
    E('v_add_u32 v5, s64, v5')
    E('v_lshlrev_b32 v6, 1, v5')
    E('v_lshlrev_b32 v7, 13, v5')
    E('v_lshlrev_b32 v8, 4, v4')
    E('s_lshl_b32 s66, s62, 7')
    E('v_add3_u32 v7, v7, v8, s66')
    E('v_mul_u32_u24 v9, 0x1c00, v5')
    E('v_add3_u32 v9, v9, v8, s66')
    E('s_mov_b32 s70, 8192'); E('s_mov_b32 s71, 16384'); E('s_mov_b32 s72, 24576')
    E('s_mov_b32 s73, 7168'); E('s_mov_b32 s74, 14336'); E('s_mov_b32 s75, 21504')
    srd_ready(A, bufs)
    E('buffer_load_dwordx2 v[10:11], v6, %s, 0 offen' % srd(SX), 'x')
    so = ['0', 's70', 's71', 's72']
    for i in range(4):
        E('buffer_load_dwordx4 v[%d:%d], v7, %s, %s offen' % (16 + 4 * i, 19 + 4 * i, srd(SWQ), so[i]), 'wq')
    E('s_cmp_ge_u32 s62, 56')
    E('s_cbranch_scc1 k1_nogu')
    so = ['0', 's73', 's74', 's75']
    for i in range(4):
        E('buffer_load_dwordx4 v[%d:%d], v9, %s, %s offen' % (32 + 4 * i, 35 + 4 * i, srd(SWG), so[i]), 'g')
    for i in range(4):
        E('buffer_load_dwordx4 v[%d:%d], v9, %s, %s offen' % (48 + 4 * i, 51 + 4 * i, srd(SWU), so[i]), 'u')
    A.label('k1_nogu')
    A.wait_vm_all()
    E('v_lshlrev_b32 v12, 16, v10'); E('v_and_b32 v13, 0xffff0000, v10')
    E('v_lshlrev_b32 v14, 16, v11'); E('v_and_b32 v15, 0xffff0000, v11')
    xs = ['v12', 'v13', 'v14', 'v15']
    E('v_lshrrev_b32 v1, 4, v2')
    E('v_lshlrev_b32 v1, 3, v1')
    E('v_lshl_add_u32 v1, v4, 5, v1')
    E('s_lshl_b32 s65, s60, 8')
    E('v_add_u32 v1, s65, v1')
    for arr, (wb, acc) in enumerate([(16, 64), (32, 72), (48, 80)]):
        gemv_acc(A, acc, [wb, wb + 4, wb + 8, wb + 12], xs, 88)
        reduce8_rows(A, acc)
        for e in range(2):
            E('v_add_f32_dpp v%d, v%d, v%d row_ror:8 row_mask:0xf bank_mask:0xf' % (acc + e, acc + e, acc + e))
        E('ds_write_b64 v1, v[%d:%d] offset:%d' % (acc, acc + 1, arr * 2048))
    E('s_waitcnt lgkmcnt(0)')
    E('s_barrier')
    E('s_cmp_ge_u32 s60, 3')
    E('s_cbranch_scc1 k1_kernel_end')
    E('s_cmp_eq_u32 s60, 0')
    E('s_cbranch_scc1 k1_fin')
    E('s_cmp_ge_u32 s62, 56')
    E('s_cbranch_scc1 k1_kernel_end')
    A.label('k1_fin')
    E('s_lshl_b32 s65, s60, 11')
    E('v_lshlrev_b32 v1, 2, v2')
    E('v_add_u32 v3, s65, v1')
    for v in range(8):
        E('ds_read_b32 v%d, v3 offset:%d' % (16 + v, v * 256))
    E('s_lshl_b32 s66, s62, 8')
    E('s_lshl_b32 s67, s63, 14')
    E('s_mul_i32 s68, s63, 28672')
    E('s_add_u32 s68, s68, 0x%x' % GU)
    E('s_add_u32 s69, s68, 14336')
    E('s_cmp_eq_u32 s60, 1')
    E('s_cselect_b32 s67, s68, s67')
    E('s_cmp_eq_u32 s60, 2')
    E('s_cselect_b32 s67, s69, s67')
    E('s_add_u32 s67, s67, s66')
    E('s_waitcnt lgkmcnt(0)')
    E('v_add_f32 v16, v16, v17'); E('v_add_f32 v18, v18, v19'); E('v_add_f32 v20, v20, v21'); E('v_add_f32 v22, v22, v23')
    E('v_add_f32 v16, v16, v18'); E('v_add_f32 v20, v20, v22'); E('v_add_f32 v16, v16, v20')
    E('buffer_store_dword v16, v1, %s, s67 offen' % srd(SWS))
    epilogue(A, name, descs)

def k2(A, descs, ldflag=''):
    name = 'k2_kernel'
    bufs = [SK, SV, SWS]
    prologue(A, name, 256, bufs)
    E = A.E
    QF, S, KB, VA, OACC = 16, 32, 64, 192, 160
    E('v_lshrrev_b32 v1, 6, v0')
    E('v_and_b32 v2, 63, v0')
    E('v_readfirstlane_b32 s60, v1')
    E('v_lshrrev_b32 v3, 4, v2')
    E('v_and_b32 v4, 15, v2')
    E('s_lshr_b32 s61, s2, 6')
    E('s_and_b32 s62, s2, 63')
    E('v_and_b32 v5, 3, v4')
    E('v_lshlrev_b32 v5, 2, v5')
    E('v_lshrrev_b32 v6, 2, v4')
    E('v_add_u32 v5, v5, v6')
    E('v_lshlrev_b32 v5, 8, v5')
    E('v_lshl_add_u32 v5, v3, 4, v5')
    E('v_lshlrev_b32 v6, 4, v2')
    E('s_lshl_b32 s63, s61, 24')
    E('s_lshl_b32 s64, s62, 18')
    E('s_add_u32 s63, s63, s64')
    E('s_lshl_b32 s64, s60, 15')
    E('s_add_u32 s63, s63, s64')
    for i in range(8):
        E('s_add_u32 s%d, s63, %d' % (64 + i, i * 4096))
    E('v_lshlrev_b32 v7, 3, v0')
    E('s_lshl_b32 s72, s61, 12')
    E('s_add_u32 s73, s72, 16384'); E('s_add_u32 s74, s72, 32768'); E('s_add_u32 s75, s72, 49152')
    E('s_mov_b32 s76, 0x05040100'); E('s_mov_b32 s77, 0x07060302')
    srd_ready(A, bufs)
    for r in range(4):
        E('buffer_load_dwordx2 v[%d:%d], v7, %s, s%d offen' % (8 + 2 * r, 9 + 2 * r, srd(SWS), 72 + r), 'q')
    def loadK(T):
        for u in range(2):
            for s in range(4):
                b = KB + 32 * T + 16 * u + 4 * s
                E('buffer_load_dwordx4 v[%d:%d], v5, %s, s%d offen offset:%d %s' % (b, b + 3, srd(SK), 64 + 2 * T + u, 64 * s, ldflag), 'K%d' % T)
    vreg = {0: VA, 1: VA + 32, 2: KB, 3: KB + 32}
    def loadV(T):
        for j in range(8):
            b = vreg[T] + 4 * j
            E('buffer_load_dwordx4 v[%d:%d], v6, %s, s%d offen offset:%d %s' % (b, b + 3, srd(SV), 64 + 2 * T + (j >> 2), 1024 * (j & 3), ldflag), 'V%d' % T)
    for T in range(4): loadK(T)
    loadV(0); loadV(1)
    A.wait_vm('q')
    E('v_add_f32 v8, v8, v10'); E('v_add_f32 v9, v9, v11'); E('v_add_f32 v12, v12, v14'); E('v_add_f32 v13, v13, v15')
    E('v_add_f32 v8, v8, v12'); E('v_add_f32 v9, v9, v13')
    E('v_cvt_pk_bf16_f32 v8, v8, v9')
    E('v_lshlrev_b32 v9, 2, v0')
    E('ds_write_b32 v9, v8')
    E('v_and_b32 v10, 7, v4')
    E('v_lshlrev_b32 v10, 8, v10')
    E('v_lshl_add_u32 v10, v3, 4, v10')
    E('s_waitcnt lgkmcnt(0)')
    E('s_barrier')
    for s in range(4):
        E('ds_read_b128 v[%d:%d], v10 offset:%d' % (QF + 4 * s, QF + 4 * s + 3, 64 * s))
    E('s_waitcnt lgkmcnt(0)')
    for T in range(4):
        A.wait_vm('K%d' % T)
        for u in range(2):
            d = S + 8 * T + 4 * u
            for s in range(4):
                b = KB + 32 * T + 16 * u + 4 * s
                c = '0' if s == 0 else 'v[%d:%d]' % (d, d + 3)
                E('v_mfma_f32_16x16x32_bf16 v[%d:%d], v[%d:%d], v[%d:%d], %s' % (d, d + 3, b, b + 3, QF + 4 * s, QF + 4 * s + 3, c))
        if T < 2:
            loadV(T + 2)
    E('v_max3_f32 v8, v%d, v%d, v%d' % (S, S + 1, S + 2))
    for i in range(3, 31, 2):
        E('v_max3_f32 v8, v8, v%d, v%d' % (S + i, S + i + 1))
    E('v_max_f32 v8, v8, v%d' % (S + 31))
    xlane(A, 'v_max_f32', 8, 9, [4, 5])
    E('s_mov_b32 s78, %s' % f2h(CEXP))
    E('v_mul_f32 v9, s78, v8')
    for i in range(32):
        E('v_fma_f32 v%d, v%d, s78, -v9' % (S + i, S + i))
    for i in range(32):
        E('v_exp_f32 v%d, v%d' % (S + i, S + i))
    E('v_add_f32 v10, v%d, v%d' % (S, S + 1))
    E('v_add_f32 v11, v%d, v%d' % (S + 2, S + 3))
    for i in range(4, 32, 2):
        E('v_add_f32 v10, v10, v%d' % (S + i))
        E('v_add_f32 v11, v11, v%d' % (S + i + 1))
    E('v_add_f32 v10, v10, v11')
    for T in range(4):
        for q in range(4):
            E('v_cvt_pk_bf16_f32 v%d, v%d, v%d' % (S + 8 * T + q, S + 8 * T + 2 * q, S + 8 * T + 2 * q + 1))
    xlane(A, 'v_add_f32', 10, 11, [4, 5])
    TB = QF
    for T in range(4):
        A.wait_vm('V%d' % T)
        vb = vreg[T]
        P = S + 8 * T
        def perms(e):
            tb = TB + 8 * (e & 1)
            for jj in range(4):
                E('v_perm_b32 v%d, v%d, v%d, s76' % (tb + jj, vb + 4 * (2 * jj + 1) + e, vb + 4 * (2 * jj) + e))
            for jj in range(4):
                E('v_perm_b32 v%d, v%d, v%d, s77' % (tb + 4 + jj, vb + 4 * (2 * jj + 1) + e, vb + 4 * (2 * jj) + e))
        def mf(e):
            tb = TB + 8 * (e & 1)
            for h in range(2):
                d = OACC + 4 * (2 * e + h)
                c = '0' if T == 0 else 'v[%d:%d]' % (d, d + 3)
                E('v_mfma_f32_16x16x32_bf16 v[%d:%d], v[%d:%d], v[%d:%d], %s' % (d, d + 3, tb + 4 * h, tb + 4 * h + 3, P, P + 3, c))
        perms(0)
        for e in range(4):
            if e < 3: perms(e + 1)
            mf(e)
    E('s_mul_i32 s64, s60, 4224')
    E('s_add_u32 s64, s64, 4096')
    E('v_mul_u32_u24 v11, 528, v4')
    E('v_lshl_add_u32 v11, v3, 7, v11')
    E('v_add_u32 v11, s64, v11')
    E('s_lshl_b32 s65, s60, 6')
    E('s_add_u32 s65, s65, 2048')
    E('v_lshlrev_b32 v12, 3, v4')
    E('v_add_u32 v12, s65, v12')
    E('v_mov_b32 v9, v10')
    E('v_cmp_gt_u32 vcc, 8, v4')
    E('s_and_saveexec_b64 s[80:81], vcc')
    for i in range(8):
        E('ds_write_b128 v11, v[%d:%d] offset:%d' % (OACC + 4 * i, OACC + 4 * i + 3, 16 * i))
    E('ds_write_b64 v12, v[8:9]')
    E('s_mov_b64 exec, s[80:81]')
    E('s_waitcnt lgkmcnt(0)')
    E('s_barrier')
    E('s_lshl_b32 s65, s60, 3')
    E('s_add_u32 s65, s65, 2048')
    E('v_mov_b32 v12, s65')
    for v in range(8):
        E('ds_read_b64 v[%d:%d], v12 offset:%d' % (16 + 2 * v, 17 + 2 * v, 64 * v))
    E('s_mul_i32 s64, s60, 528')
    E('s_add_u32 s64, s64, 4096')
    E('v_lshlrev_b32 v13, 3, v2')
    E('v_add_u32 v11, s64, v13')
    for v in range(8):
        E('ds_read_b64 v[%d:%d], v11 offset:%d' % (32 + 2 * v, 33 + 2 * v, 4224 * v))
    E('s_waitcnt lgkmcnt(0)')
    E('v_max3_f32 v8, v16, v18, v20')
    E('v_max3_f32 v8, v8, v22, v24')
    E('v_max3_f32 v8, v8, v26, v28')
    E('v_max_f32 v8, v8, v30')
    for v in range(8):
        E('v_sub_f32 v%d, v%d, v8' % (48 + v, 16 + 2 * v))
        E('v_mul_f32 v%d, s78, v%d' % (48 + v, 48 + v))
    for v in range(8):
        E('v_exp_f32 v%d, v%d' % (48 + v, 48 + v))
    E('v_mul_f32 v9, v48, v17'); E('v_mul_f32 v14, v48, v32'); E('v_mul_f32 v15, v48, v33')
    for v in range(1, 8):
        E('v_fmac_f32 v9, v%d, v%d' % (48 + v, 17 + 2 * v))
        E('v_fmac_f32 v14, v%d, v%d' % (48 + v, 32 + 2 * v))
        E('v_fmac_f32 v15, v%d, v%d' % (48 + v, 33 + 2 * v))
    E('s_lshl_b32 s64, s2, 3')
    E('s_add_u32 s64, s64, s60')
    E('s_lshl_b32 s65, s64, 9')
    E('s_add_u32 s65, s65, 0x%x' % AP)
    E('s_lshl_b32 s66, s64, 3')
    E('s_add_u32 s66, s66, 0x%x' % ML)
    E('buffer_store_dwordx2 v[14:15], v13, %s, s65 offen' % srd(SWS))
    E('v_cmp_eq_u32 vcc, 0, v2')
    E('s_and_saveexec_b64 s[80:81], vcc')
    E('buffer_store_dwordx2 v[8:9], v13, %s, s66 offen' % srd(SWS))
    epilogue(A, name, descs)

def k3(A, descs):
    name = 'k3_kernel'
    bufs = [SX, SWO, SWR, SWD, SGW, SWS]
    prologue(A, name, 256, bufs)
    E = A.E
    E('v_lshrrev_b32 v1, 6, v0')
    E('v_and_b32 v2, 63, v0')
    E('v_readfirstlane_b32 s60, v1')
    E('v_lshrrev_b32 v3, 4, v2')
    E('v_and_b32 v4, 15, v2')
    E('s_lshr_b32 s61, s2, 3')
    E('s_and_b32 s62, s2, 7')
    E('s_lshl_b32 s63, s61, 7')
    E('s_lshr_b32 s64, s62, 1')
    E('s_lshl_b32 s64, s64, 5')
    E('s_add_u32 s63, s63, s64')
    E('s_and_b32 s64, s62, 1')
    E('s_lshl_b32 s64, s64, 2')
    E('s_add_u32 s63, s63, s64')
    E('s_lshl_b32 s63, s63, 11')
    E('s_lshl_b32 s64, s60, 8')
    E('s_add_u32 s63, s63, s64')
    E('s_add_u32 s65, s63, 4096')
    E('v_lshlrev_b32 v5, 14, v3')
    E('v_lshl_add_u32 v5, v4, 4, v5')
    E('s_mul_i32 s66, s2, 28672')
    E('s_add_u32 s66, s66, s64')
    E('s_add_u32 s67, s66, 8192'); E('s_add_u32 s68, s66, 16384'); E('s_add_u32 s69, s66, 24576')
    E('v_lshlrev_b32 v6, 11, v3')
    E('v_lshl_add_u32 v6, v4, 4, v6')
    E('v_mov_b32 v8, 0x7f000000')
    E('v_cmp_gt_u32 vcc, 2, v3')
    E('v_cndmask_b32 v7, v8, v6, vcc')
    E('v_lshlrev_b32 v9, 4, v4')
    srd_ready(A, bufs)
    WB = 64
    E('buffer_load_dwordx4 v[%d:%d], v5, %s, s63 offen' % (WB, WB + 3, srd(SWO)), 'w')
    E('buffer_load_dwordx4 v[%d:%d], v5, %s, s63 offen offset:2048' % (WB + 4, WB + 7, srd(SWO)), 'w')
    E('buffer_load_dwordx4 v[%d:%d], v5, %s, s65 offen' % (WB + 8, WB + 11, srd(SWO)), 'w')
    E('buffer_load_dwordx4 v[%d:%d], v5, %s, s65 offen offset:2048' % (WB + 12, WB + 15, srd(SWO)), 'w')
    E('buffer_load_dwordx4 v[%d:%d], v6, %s, s66 offen' % (WB + 16, WB + 19, srd(SWD)), 'w')
    E('buffer_load_dwordx4 v[%d:%d], v6, %s, s67 offen' % (WB + 20, WB + 23, srd(SWD)), 'w')
    E('buffer_load_dwordx4 v[%d:%d], v6, %s, s68 offen' % (WB + 24, WB + 27, srd(SWD)), 'w')
    E('buffer_load_dwordx4 v[%d:%d], v7, %s, s69 offen' % (WB + 28, WB + 31, srd(SWD)), 'w')
    E('buffer_load_dwordx4 v[%d:%d], v9, %s, s64 offen' % (WB + 32, WB + 35, srd(SX)), 'w')
    E('s_mov_b32 s78, %s' % f2h(CEXP))
    E('s_cmp_eq_u32 s60, 0'); E('s_cbranch_scc1 k3_comb')
    E('s_cmp_eq_u32 s60, 1'); E('s_cbranch_scc1 k3_h')
    E('s_cmp_eq_u32 s60, 2'); E('s_cbranch_scc1 k3_sc')
    E('s_branch k3_join')
    A.label('k3_comb')
    vm_save = list(A.vm)
    E('v_lshrrev_b32 v10, 2, v2')
    E('v_and_b32 v11, 3, v2')
    E('v_lshlrev_b32 v12, 12, v10')
    E('v_lshl_add_u32 v12, v11, 4, v12')
    E('v_lshlrev_b32 v13, 6, v10')
    E('s_lshr_b32 s70, s61, 3'); E('s_lshl_b32 s70, s70, 9'); E('s_and_b32 s71, s61, 7'); E('s_add_u32 s70, s70, s71')
    E('s_lshl_b32 s71, s70, 9'); E('s_lshl_b32 s72, s62, 6'); E('s_add_u32 s71, s71, s72'); E('s_add_u32 s71, s71, 0x%x' % AP)
    E('s_add_u32 s72, s71, 0x10000'); E('s_add_u32 s73, s71, 0x20000'); E('s_add_u32 s74, s71, 0x30000')
    E('s_lshl_b32 s75, s70, 3'); E('s_add_u32 s75, s75, 0x%x' % ML)
    for r in range(4):
        E('buffer_load_dwordx2 v[%d:%d], v13, %s, s75 offen offset:%d' % (16 + 2 * r, 17 + 2 * r, srd(SWS), 1024 * r), 'c')
    for r in range(4):
        E('buffer_load_dwordx4 v[%d:%d], v12, %s, s%d offen' % (24 + 4 * r, 27 + 4 * r, srd(SWS), 71 + r), 'c')
    A.wait_vm_all()
    E('v_max3_f32 v14, v16, v18, v20')
    E('v_max_f32 v14, v14, v22')
    xlane(A, 'v_max_f32', 14, 15, [2, 3, 4, 5])
    for r in range(4):
        E('v_sub_f32 v%d, v%d, v14' % (40 + r, 16 + 2 * r))
        E('v_mul_f32 v%d, s78, v%d' % (40 + r, 40 + r))
    for r in range(4):
        E('v_exp_f32 v%d, v%d' % (40 + r, 40 + r))
    E('v_mul_f32 v45, v40, v17')
    for q in range(4):
        E('v_mul_f32 v%d, v40, v%d' % (46 + q, 24 + q))
    for r in range(1, 4):
        E('v_fmac_f32 v45, v%d, v%d' % (40 + r, 17 + 2 * r))
        for q in range(4):
            E('v_fmac_f32 v%d, v%d, v%d' % (46 + q, 40 + r, 24 + 4 * r + q))
    for q in range(5):
        xlane(A, 'v_add_f32', 45 + q, 15, [2, 3, 4, 5])
    E('v_rcp_f32 v45, v45')
    for q in range(4):
        E('v_mul_f32 v%d, v%d, v45' % (46 + q, 46 + q))
    for q in range(4):
        bf16r(A, 46 + q)
    E('v_lshlrev_b32 v11, 4, v11')
    E('ds_write_b128 v11, v[46:49]')
    E('s_branch k3_join')
    A.label('k3_h')
    A.vm = list(vm_save)
    E('v_lshrrev_b32 v10, 2, v2')
    E('v_and_b32 v11, 3, v2')
    E('v_mul_u32_u24 v12, 28672, v11')
    E('v_lshl_add_u32 v12, v10, 2, v12')
    E('s_mul_i32 s70, s2, 56')
    E('s_add_u32 s70, s70, 0x%x' % GU)
    E('s_add_u32 s71, s70, 14336')
    E('buffer_load_dword v16, v12, %s, s70 offen' % srd(SWS), 'c')
    E('buffer_load_dword v17, v12, %s, s71 offen' % srd(SWS), 'c')
    A.wait_vm_all()
    xlane(A, 'v_add_f32', 16, 15, [0, 1])
    xlane(A, 'v_add_f32', 17, 15, [0, 1])
    bf16r(A, 16); bf16r(A, 17)
    sigmoid(A, 18, 16)
    E('v_mul_f32 v18, v18, v16')
    bf16r(A, 18)
    E('v_mul_f32 v18, v18, v17')
    bf16r(A, 18)
    E('v_cmp_gt_u32 vcc, 56, v2')
    E('v_cndmask_b32 v18, 0, v18, vcc')
    E('v_lshlrev_b32 v10, 2, v10')
    E('ds_write_b32 v10, v18 offset:64')
    E('s_branch k3_join')
    A.label('k3_sc')
    A.vm = list(vm_save)
    E('v_lshlrev_b32 v10, 5, v2')
    for i, b in enumerate([SX, SGW, SWR]):
        E('buffer_load_dwordx4 v[%d:%d], v10, %s, 0 offen' % (16 + 8 * i, 19 + 8 * i, srd(b)), 'c')
        E('buffer_load_dwordx4 v[%d:%d], v10, %s, 0 offen offset:16' % (20 + 8 * i, 23 + 8 * i, srd(b)), 'c')
    A.wait_vm_all()
    E('v_mov_b32 v40, 0'); E('v_mov_b32 v41, 0')
    for e in range(8):
        E('v_lshlrev_b32 v42, 16, v%d' % (16 + e)); E('v_and_b32 v43, 0xffff0000, v%d' % (16 + e))
        E('v_lshlrev_b32 v44, 16, v%d' % (24 + e)); E('v_and_b32 v45, 0xffff0000, v%d' % (24 + e))
        E('v_lshlrev_b32 v46, 16, v%d' % (32 + e)); E('v_and_b32 v47, 0xffff0000, v%d' % (32 + e))
        E('v_fmac_f32 v40, v42, v44'); E('v_fmac_f32 v40, v43, v45')
        E('v_fmac_f32 v41, v42, v46'); E('v_fmac_f32 v41, v43, v47')
    xlane(A, 'v_add_f32', 40, 15, [0, 1, 2, 3, 4, 5])
    xlane(A, 'v_add_f32', 41, 15, [0, 1, 2, 3, 4, 5])
    bf16r(A, 40); bf16r(A, 41)
    sigmoid(A, 42, 40); bf16r(A, 42)
    sigmoid(A, 43, 41); bf16r(A, 43)
    E('v_sub_f32 v44, 1.0, v42'); bf16r(A, 44)
    E('v_mul_f32 v43, v43, v44')
    E('v_mov_b32 v45, 0')
    E('v_mov_b32 v10, 128')
    E('ds_write_b128 v10, v[42:45]')
    A.label('k3_join')
    A.vm = list(vm_save)
    A.flush_hist()
    E('s_waitcnt lgkmcnt(0)')
    E('s_barrier')
    E('v_lshlrev_b32 v10, 2, v3')
    for i in range(8):
        E('ds_read_b32 v%d, v10 offset:%d' % (16 + i, 16 * i))
    E('v_mov_b32 v11, 128')
    E('ds_read_b128 v[24:27], v11')
    E('s_waitcnt lgkmcnt(0)')
    for i in range(4):
        E('v_mul_f32 v%d, v%d, v24' % (16 + i, 16 + i))
    for i in range(4, 8):
        E('v_mul_f32 v%d, v%d, v25' % (16 + i, 16 + i))
    E('s_cmp_eq_u32 s2, 0')
    E('s_cselect_b32 s70, 1, 0')
    E('v_cmp_gt_u32 vcc, s70, v3')
    E('v_cndmask_b32 v28, 0, v26, vcc')
    A.wait_vm_all()
    gemv_acc(A, 32, [WB + 4 * i for i in range(9)], ['v%d' % (16 + i) for i in range(8)] + ['v28'], 40)
    reduce8_rows(A, 32)
    E('v_lshlrev_b32 v10, 3, v3')
    E('v_lshl_add_u32 v10, v4, 5, v10')
    E('s_lshl_b32 s70, s2, 12')
    E('s_lshl_b32 s71, s60, 9')
    E('s_add_u32 s70, s70, s71')
    E('s_add_u32 s70, s70, 0x%x' % ZP)
    E('buffer_store_dwordx2 v[32:33], v10, %s, s70 offen' % srd(SWS))
    epilogue(A, name, descs)

def k4(A, descs):
    name = 'k4_kernel'
    bufs = [SOUT, SWS]
    prologue(A, name, 256, bufs)
    E = A.E
    E('v_lshlrev_b32 v1, 12, v0')
    E('s_lshl_b32 s60, s2, 4')
    E('s_add_u32 s60, s60, 0x%x' % ZP)
    E('s_add_u32 s61, s60, 0x40000'); E('s_add_u32 s62, s60, 0x80000'); E('s_add_u32 s63, s60, 0xc0000')
    srd_ready(A, bufs)
    for i in range(4):
        E('buffer_load_dwordx4 v[%d:%d], v1, %s, s%d offen' % (8 + 4 * i, 11 + 4 * i, srd(SWS), 60 + i), 'z')
    A.wait_vm_all()
    for q in range(4):
        E('v_add_f32 v%d, v%d, v%d' % (8 + q, 8 + q, 12 + q))
        E('v_add_f32 v%d, v%d, v%d' % (16 + q, 16 + q, 20 + q))
    for q in range(4):
        E('v_add_f32 v%d, v%d, v%d' % (8 + q, 8 + q, 16 + q))
    E('v_permlane32_swap_b32 v8, v10'); E('v_permlane32_swap_b32 v9, v11')
    E('v_add_f32 v8, v8, v10'); E('v_add_f32 v9, v9, v11')
    E('v_permlane16_swap_b32 v8, v9')
    E('v_add_f32 v8, v8, v9')
    xlane(A, 'v_add_f32', 8, 15, [0, 1, 2, 3])
    E('v_cvt_pk_bf16_f32 v8, v8, v8')
    E('v_lshrrev_b32 v2, 4, v0')
    E('v_lshlrev_b32 v2, 1, v2')
    E('s_lshl_b32 s60, s2, 3')
    E('v_and_b32 v3, 15, v0')
    E('v_cmp_eq_u32 vcc, 0, v3')
    E('s_and_saveexec_b64 s[80:81], vcc')
    E('buffer_store_short v8, v2, %s, s60 offen' % srd(SOUT))
    epilogue(A, name, descs)

def main(out, ldflag=''):
    A = Asm()
    hdr = ['; generated by gen/gen_base.py (own generator)',
           '; @launch kernel=k1_kernel grid=(256,1,1) block=(512,1,1) lds=8192',
           '; @launch kernel=k2_kernel grid=(256,1,1) block=(512,1,1) lds=40960',
           '; @launch kernel=k3_kernel grid=(256,1,1) block=(512,1,1) lds=1024',
           '; @launch kernel=k4_kernel grid=(256,1,1) block=(64,1,1) lds=0',
           '.amdgcn_target "amdgcn-amd-amdhsa--gfx950"', '.text']
    for h in hdr: A.raw(h)
    descs = []
    k1(A, descs); k2(A, descs, ldflag); k3(A, descs); k4(A, descs)
    A.raw('.section .rodata,"a"')
    for name, nv, ns in descs:
        nv4 = (nv + 3) // 4 * 4
        A.raw('.p2align 6')
        A.raw('.amdhsa_kernel %s' % name)
        A.raw('  .amdhsa_next_free_vgpr %d' % nv4)
        A.raw('  .amdhsa_next_free_sgpr %d' % max(ns, 16))
        A.raw('  .amdhsa_accum_offset %d' % nv4)
        A.raw('  .amdhsa_group_segment_fixed_size 0')
        A.raw('  .amdhsa_kernarg_size 112')
        A.raw('  .amdhsa_user_sgpr_count 2')
        A.raw('  .amdhsa_user_sgpr_kernarg_segment_ptr 1')
        A.raw('  .amdhsa_system_sgpr_workgroup_id_x 1')
        A.raw('.end_amdhsa_kernel')
    open(out, 'w').write(A.text())

if __name__ == '__main__':
    out = sys.argv[1] if len(sys.argv) > 1 else 'cdna_kernels/%s.s' % NAME
    main(out, sys.argv[2] if len(sys.argv) > 2 else '')
```

```python
import sys
sys.path.insert(0, 'gen')
from asmlib import Asm

NAME = 'gated_mix__gqa_block_cached__moe_arch_mod__decode'
SX, SK, SV, SWQ, SWO, SWR, SWG, SWU, SWD, SGW, SOUT, SDBG, SWS = 8, 12, 16, 20, 24, 28, 32, 36, 40, 44, 48, 52, 56
KARG = {SX: (0, 2048), SK: (8, 0x4000000), SV: (16, 0x4000000), SWQ: (24, 0x800000), SWO: (32, 0x800000),
        SWR: (48, 2048), SWG: (56, 0x700000), SWU: (64, 0x700000), SWD: (72, 0x700000), SGW: (80, 2048),
        SOUT: (88, 2048), SDBG: (96, 256), SWS: (104, 0x10000000)}
QP = 0x0
GU = 0x10000
AP = 0x40000
ML = 0x140000
ZP = 0x180000
CEXP = 0.08838834764831845 * 1.4426950408889634
LOG2E = 1.4426950408889634

import struct
def f2h(x):
    return '0x%08x' % struct.unpack('<I', struct.pack('<f', x))[0]

def srd(b): return 's[%d:%d]' % (b, b + 3)
def vr(a, n=1): return 'v%d' % a if n == 1 else 'v[%d:%d]' % (a, a + n - 1)

def prologue(A, name, nwg, bufs):
    A.raw('.p2align 8')
    A.raw('.globl %s' % name)
    A.raw('.type %s,@function' % name)
    A.label(name)
    A.hist = []; A.vm = []; A.maxv = 1; A.maxs = 3
    A.E('s_cmp_ge_u32 s2, %d' % nwg)
    A.E('s_cbranch_scc1 %s_end' % name)
    for b in bufs:
        A.E('s_load_dwordx2 s[%d:%d], s[0:1], %d' % (b, b + 1, KARG[b][0]))
    for b in bufs:
        A.E('s_mov_b32 s%d, 0x%x' % (b + 2, KARG[b][1]))
        A.E('s_mov_b32 s%d, 0x00020000' % (b + 3))

def srd_ready(A, bufs):
    A.E('s_waitcnt lgkmcnt(0)')
    for b in bufs:
        A.E('s_and_b32 s%d, s%d, 0xffff' % (b + 1, b + 1))

def epilogue(A, name, descs):
    A.label(name + '_end')
    A.E('s_endpgm')
    descs.append((name, A.maxv, A.maxs))

def gemv_acc(A, acc, w, xs, tmp, first=True):
    for i, wb in enumerate(w):
        for e in range(4):
            A.E('v_lshlrev_b32 v%d, 16, v%d' % (tmp, wb + e))
            A.E('v_and_b32 v%d, 0xffff0000, v%d' % (tmp + 1, wb + e))
            if first and i == 0:
                A.E('v_mul_f32 v%d, v%d, %s' % (acc + 2 * e, tmp, xs[i]))
                A.E('v_mul_f32 v%d, v%d, %s' % (acc + 2 * e + 1, tmp + 1, xs[i]))
            else:
                A.E('v_fmac_f32 v%d, v%d, %s' % (acc + 2 * e, tmp, xs[i]))
                A.E('v_fmac_f32 v%d, v%d, %s' % (acc + 2 * e + 1, tmp + 1, xs[i]))

def reduce8_rows(A, acc):
    for e in range(4):
        A.E('v_permlane32_swap_b32 v%d, v%d' % (acc + e, acc + e + 4))
    for e in range(4):
        A.E('v_add_f32 v%d, v%d, v%d' % (acc + e, acc + e, acc + e + 4))
    for e in range(2):
        A.E('v_permlane16_swap_b32 v%d, v%d' % (acc + e, acc + e + 2))
    for e in range(2):
        A.E('v_add_f32 v%d, v%d, v%d' % (acc + e, acc + e, acc + e + 2))

def xlane(A, op, r, tmp, bits):
    for b in bits:
        if b < 4:
            if b == 0: mod = 'quad_perm:[1,0,3,2]'
            elif b == 1: mod = 'quad_perm:[2,3,0,1]'
            elif b == 2: mod = 'row_ror:4'
            else: mod = 'row_ror:8'
            A.E('%s_dpp v%d, v%d, v%d %s row_mask:0xf bank_mask:0xf' % (op, r, r, r, mod))
        else:
            A.E('v_mov_b32 v%d, v%d' % (tmp, r))
            A.E('v_permlane%d_swap_b32 v%d, v%d' % (16 if b == 4 else 32, r, tmp))
            A.E('%s v%d, v%d, v%d' % (op, r, r, tmp))

def bf16r(A, r):
    A.E('v_cvt_pk_bf16_f32 v%d, v%d, v%d' % (r, r, r))
    A.E('v_lshlrev_b32 v%d, 16, v%d' % (r, r))

def sigmoid(A, dst, src):
    A.E('v_mul_f32 v%d, %s, v%d' % (dst, f2h(-LOG2E), src))
    A.E('v_exp_f32 v%d, v%d' % (dst, dst))
    A.E('v_add_f32 v%d, 1.0, v%d' % (dst, dst))
    A.E('v_rcp_f32 v%d, v%d' % (dst, dst))

def k1(A, descs, wf=''):
    name = 'k1_kernel'
    bufs = [SX, SWQ, SWG, SWU, SWS]
    prologue(A, name, 256, bufs)
    E = A.E
    E('v_lshrrev_b32 v1, 6, v0')
    E('v_and_b32 v2, 63, v0')
    E('v_readfirstlane_b32 s60, v1')
    E('v_lshrrev_b32 v3, 3, v2')
    E('v_and_b32 v4, 7, v2')
    E('s_lshr_b32 s61, s2, 6')
    E('s_and_b32 s62, s2, 15')
    E('s_lshl_b32 s63, s61, 4')
    E('s_add_u32 s62, s62, s63')
    E('s_bfe_u32 s63, s2, 0x20004')
    E('s_lshl_b32 s64, s63, 8')
    E('s_lshl_b32 s65, s60, 5')
    E('s_add_u32 s64, s64, s65')
    E('v_lshlrev_b32 v5, 2, v3')
    E('v_add_u32 v5, s64, v5')
    E('v_lshlrev_b32 v6, 1, v5')
    E('v_lshlrev_b32 v7, 13, v5')
    E('v_lshlrev_b32 v8, 4, v4')
    E('s_lshl_b32 s66, s62, 7')
    E('v_add3_u32 v7, v7, v8, s66')
    E('v_mul_u32_u24 v9, 0x1c00, v5')
    E('v_add3_u32 v9, v9, v8, s66')
    E('s_mov_b32 s70, 8192'); E('s_mov_b32 s71, 16384'); E('s_mov_b32 s72, 24576')
    E('s_mov_b32 s73, 7168'); E('s_mov_b32 s74, 14336'); E('s_mov_b32 s75, 21504')
    srd_ready(A, bufs)
    E('buffer_load_dwordx2 v[10:11], v6, %s, 0 offen' % srd(SX), 'x')
    so = ['0', 's70', 's71', 's72']
    for i in range(4):
        E('buffer_load_dwordx4 v[%d:%d], v7, %s, %s offen' % (16 + 4 * i, 19 + 4 * i, srd(SWQ), so[i]) + ' ' + wf, 'wq')
    E('s_cmp_ge_u32 s62, 56')
    E('s_cbranch_scc1 k1_nogu')
    so = ['0', 's73', 's74', 's75']
    for i in range(4):
        E('buffer_load_dwordx4 v[%d:%d], v9, %s, %s offen' % (32 + 4 * i, 35 + 4 * i, srd(SWG), so[i]) + ' ' + wf, 'g')
    for i in range(4):
        E('buffer_load_dwordx4 v[%d:%d], v9, %s, %s offen' % (48 + 4 * i, 51 + 4 * i, srd(SWU), so[i]) + ' ' + wf, 'u')
    A.label('k1_nogu')
    A.wait_vm_all()
    E('v_lshlrev_b32 v12, 16, v10'); E('v_and_b32 v13, 0xffff0000, v10')
    E('v_lshlrev_b32 v14, 16, v11'); E('v_and_b32 v15, 0xffff0000, v11')
    xs = ['v12', 'v13', 'v14', 'v15']
    E('v_lshrrev_b32 v1, 4, v2')
    E('v_lshlrev_b32 v1, 3, v1')
    E('v_lshl_add_u32 v1, v4, 5, v1')
    E('s_lshl_b32 s65, s60, 8')
    E('v_add_u32 v1, s65, v1')
    for arr, (wb, acc) in enumerate([(16, 64), (32, 72), (48, 80)]):
        gemv_acc(A, acc, [wb, wb + 4, wb + 8, wb + 12], xs, 88)
        reduce8_rows(A, acc)
        for e in range(2):
            E('v_add_f32_dpp v%d, v%d, v%d row_ror:8 row_mask:0xf bank_mask:0xf' % (acc + e, acc + e, acc + e))
        E('ds_write_b64 v1, v[%d:%d] offset:%d' % (acc, acc + 1, arr * 2048))
    E('s_waitcnt lgkmcnt(0)')
    E('s_barrier')
    E('s_cmp_ge_u32 s60, 3')
    E('s_cbranch_scc1 k1_kernel_end')
    E('s_cmp_eq_u32 s60, 0')
    E('s_cbranch_scc1 k1_fin')
    E('s_cmp_ge_u32 s62, 56')
    E('s_cbranch_scc1 k1_kernel_end')
    A.label('k1_fin')
    E('s_lshl_b32 s65, s60, 11')
    E('v_lshlrev_b32 v1, 2, v2')
    E('v_add_u32 v3, s65, v1')
    for v in range(8):
        E('ds_read_b32 v%d, v3 offset:%d' % (16 + v, v * 256))
    E('s_lshl_b32 s66, s62, 8')
    E('s_lshl_b32 s67, s63, 14')
    E('s_mul_i32 s68, s63, 28672')
    E('s_add_u32 s68, s68, 0x%x' % GU)
    E('s_add_u32 s69, s68, 14336')
    E('s_cmp_eq_u32 s60, 1')
    E('s_cselect_b32 s67, s68, s67')
    E('s_cmp_eq_u32 s60, 2')
    E('s_cselect_b32 s67, s69, s67')
    E('s_add_u32 s67, s67, s66')
    E('s_waitcnt lgkmcnt(0)')
    E('v_add_f32 v16, v16, v17'); E('v_add_f32 v18, v18, v19'); E('v_add_f32 v20, v20, v21'); E('v_add_f32 v22, v22, v23')
    E('v_add_f32 v16, v16, v18'); E('v_add_f32 v20, v20, v22'); E('v_add_f32 v16, v16, v20')
    E('buffer_store_dword v16, v1, %s, s67 offen' % srd(SWS))
    epilogue(A, name, descs)

def k2(A, descs, ldflag=''):
    name = 'k2_kernel'
    bufs = [SK, SV, SWS]
    prologue(A, name, 256, bufs)
    E = A.E
    QF, S, KB, VA, OACC = 16, 32, 64, 192, 160
    E('v_lshrrev_b32 v1, 6, v0')
    E('v_and_b32 v2, 63, v0')
    E('v_readfirstlane_b32 s60, v1')
    E('v_lshrrev_b32 v3, 4, v2')
    E('v_and_b32 v4, 15, v2')
    E('s_lshr_b32 s61, s2, 6')
    E('s_and_b32 s62, s2, 63')
    E('v_and_b32 v5, 3, v4')
    E('v_lshlrev_b32 v5, 2, v5')
    E('v_lshrrev_b32 v6, 2, v4')
    E('v_add_u32 v5, v5, v6')
    E('v_lshlrev_b32 v5, 8, v5')
    E('v_lshl_add_u32 v5, v3, 4, v5')
    E('v_lshlrev_b32 v6, 4, v2')
    E('s_lshl_b32 s63, s61, 24')
    E('s_lshl_b32 s64, s62, 18')
    E('s_add_u32 s63, s63, s64')
    E('s_lshl_b32 s64, s60, 15')
    E('s_add_u32 s63, s63, s64')
    for i in range(8):
        E('s_add_u32 s%d, s63, %d' % (64 + i, i * 4096))
    E('v_lshlrev_b32 v7, 3, v0')
    E('s_lshl_b32 s72, s61, 12')
    E('s_add_u32 s73, s72, 16384'); E('s_add_u32 s74, s72, 32768'); E('s_add_u32 s75, s72, 49152')
    E('s_mov_b32 s76, 0x05040100'); E('s_mov_b32 s77, 0x07060302')
    srd_ready(A, bufs)
    for r in range(4):
        E('buffer_load_dwordx2 v[%d:%d], v7, %s, s%d offen' % (8 + 2 * r, 9 + 2 * r, srd(SWS), 72 + r), 'q')
    def loadK(T):
        for u in range(2):
            for s in range(4):
                b = KB + 32 * T + 16 * u + 4 * s
                E('buffer_load_dwordx4 v[%d:%d], v5, %s, s%d offen offset:%d %s' % (b, b + 3, srd(SK), 64 + 2 * T + u, 64 * s, ldflag), 'K%d' % T)
    vreg = {0: VA, 1: VA + 32, 2: KB, 3: KB + 32}
    def loadV(T):
        for j in range(8):
            b = vreg[T] + 4 * j
            E('buffer_load_dwordx4 v[%d:%d], v6, %s, s%d offen offset:%d %s' % (b, b + 3, srd(SV), 64 + 2 * T + (j >> 2), 1024 * (j & 3), ldflag), 'V%d' % T)
    for T in range(4): loadK(T)
    loadV(0); loadV(1)
    A.wait_vm('q')
    E('v_add_f32 v8, v8, v10'); E('v_add_f32 v9, v9, v11'); E('v_add_f32 v12, v12, v14'); E('v_add_f32 v13, v13, v15')
    E('v_add_f32 v8, v8, v12'); E('v_add_f32 v9, v9, v13')
    E('v_cvt_pk_bf16_f32 v8, v8, v9')
    E('v_lshlrev_b32 v9, 2, v0')
    E('ds_write_b32 v9, v8')
    E('v_and_b32 v10, 7, v4')
    E('v_lshlrev_b32 v10, 8, v10')
    E('v_lshl_add_u32 v10, v3, 4, v10')
    E('s_waitcnt lgkmcnt(0)')
    E('s_barrier')
    for s in range(4):
        E('ds_read_b128 v[%d:%d], v10 offset:%d' % (QF + 4 * s, QF + 4 * s + 3, 64 * s))
    E('s_waitcnt lgkmcnt(0)')
    for T in range(4):
        A.wait_vm('K%d' % T)
        for u in range(2):
            d = S + 8 * T + 4 * u
            for s in range(4):
                b = KB + 32 * T + 16 * u + 4 * s
                c = '0' if s == 0 else 'v[%d:%d]' % (d, d + 3)
                E('v_mfma_f32_16x16x32_bf16 v[%d:%d], v[%d:%d], v[%d:%d], %s' % (d, d + 3, b, b + 3, QF + 4 * s, QF + 4 * s + 3, c))
        if T < 2:
            loadV(T + 2)
    E('v_max3_f32 v8, v%d, v%d, v%d' % (S, S + 1, S + 2))
    for i in range(3, 31, 2):
        E('v_max3_f32 v8, v8, v%d, v%d' % (S + i, S + i + 1))
    E('v_max_f32 v8, v8, v%d' % (S + 31))
    xlane(A, 'v_max_f32', 8, 9, [4, 5])
    E('s_mov_b32 s78, %s' % f2h(CEXP))
    E('v_mul_f32 v9, s78, v8')
    for i in range(32):
        E('v_fma_f32 v%d, v%d, s78, -v9' % (S + i, S + i))
    for i in range(32):
        E('v_exp_f32 v%d, v%d' % (S + i, S + i))
    E('v_add_f32 v10, v%d, v%d' % (S, S + 1))
    E('v_add_f32 v11, v%d, v%d' % (S + 2, S + 3))
    for i in range(4, 32, 2):
        E('v_add_f32 v10, v10, v%d' % (S + i))
        E('v_add_f32 v11, v11, v%d' % (S + i + 1))
    E('v_add_f32 v10, v10, v11')
    for T in range(4):
        for q in range(4):
            E('v_cvt_pk_bf16_f32 v%d, v%d, v%d' % (S + 8 * T + q, S + 8 * T + 2 * q, S + 8 * T + 2 * q + 1))
    xlane(A, 'v_add_f32', 10, 11, [4, 5])
    TB = QF
    for T in range(4):
        A.wait_vm('V%d' % T)
        vb = vreg[T]
        P = S + 8 * T
        def perms(e):
            tb = TB + 8 * (e & 1)
            for jj in range(4):
                E('v_perm_b32 v%d, v%d, v%d, s76' % (tb + jj, vb + 4 * (2 * jj + 1) + e, vb + 4 * (2 * jj) + e))
            for jj in range(4):
                E('v_perm_b32 v%d, v%d, v%d, s77' % (tb + 4 + jj, vb + 4 * (2 * jj + 1) + e, vb + 4 * (2 * jj) + e))
        def mf(e):
            tb = TB + 8 * (e & 1)
            for h in range(2):
                d = OACC + 4 * (2 * e + h)
                c = '0' if T == 0 else 'v[%d:%d]' % (d, d + 3)
                E('v_mfma_f32_16x16x32_bf16 v[%d:%d], v[%d:%d], v[%d:%d], %s' % (d, d + 3, tb + 4 * h, tb + 4 * h + 3, P, P + 3, c))
        perms(0)
        for e in range(4):
            if e < 3: perms(e + 1)
            mf(e)
    E('s_mul_i32 s64, s60, 4224')
    E('s_add_u32 s64, s64, 4096')
    E('v_mul_u32_u24 v11, 528, v4')
    E('v_lshl_add_u32 v11, v3, 7, v11')
    E('v_add_u32 v11, s64, v11')
    E('s_lshl_b32 s65, s60, 6')
    E('s_add_u32 s65, s65, 2048')
    E('v_lshlrev_b32 v12, 3, v4')
    E('v_add_u32 v12, s65, v12')
    E('v_mov_b32 v9, v10')
    E('v_cmp_gt_u32 vcc, 8, v4')
    E('s_and_saveexec_b64 s[80:81], vcc')
    for i in range(8):
        E('ds_write_b128 v11, v[%d:%d] offset:%d' % (OACC + 4 * i, OACC + 4 * i + 3, 16 * i))
    E('ds_write_b64 v12, v[8:9]')
    E('s_mov_b64 exec, s[80:81]')
    E('s_waitcnt lgkmcnt(0)')
    E('s_barrier')
    E('s_lshl_b32 s65, s60, 3')
    E('s_add_u32 s65, s65, 2048')
    E('v_mov_b32 v12, s65')
    for v in range(8):
        E('ds_read_b64 v[%d:%d], v12 offset:%d' % (16 + 2 * v, 17 + 2 * v, 64 * v))
    E('s_mul_i32 s64, s60, 528')
    E('s_add_u32 s64, s64, 4096')
    E('v_lshlrev_b32 v13, 3, v2')
    E('v_add_u32 v11, s64, v13')
    for v in range(8):
        E('ds_read_b64 v[%d:%d], v11 offset:%d' % (32 + 2 * v, 33 + 2 * v, 4224 * v))
    E('s_waitcnt lgkmcnt(0)')
    E('v_max3_f32 v8, v16, v18, v20')
    E('v_max3_f32 v8, v8, v22, v24')
    E('v_max3_f32 v8, v8, v26, v28')
    E('v_max_f32 v8, v8, v30')
    for v in range(8):
        E('v_sub_f32 v%d, v%d, v8' % (48 + v, 16 + 2 * v))
        E('v_mul_f32 v%d, s78, v%d' % (48 + v, 48 + v))
    for v in range(8):
        E('v_exp_f32 v%d, v%d' % (48 + v, 48 + v))
    E('v_mul_f32 v9, v48, v17'); E('v_mul_f32 v14, v48, v32'); E('v_mul_f32 v15, v48, v33')
    for v in range(1, 8):
        E('v_fmac_f32 v9, v%d, v%d' % (48 + v, 17 + 2 * v))
        E('v_fmac_f32 v14, v%d, v%d' % (48 + v, 32 + 2 * v))
        E('v_fmac_f32 v15, v%d, v%d' % (48 + v, 33 + 2 * v))
    E('s_lshl_b32 s64, s2, 3')
    E('s_add_u32 s64, s64, s60')
    E('s_lshl_b32 s65, s64, 9')
    E('s_add_u32 s65, s65, 0x%x' % AP)
    E('s_lshl_b32 s66, s64, 3')
    E('s_add_u32 s66, s66, 0x%x' % ML)
    E('buffer_store_dwordx2 v[14:15], v13, %s, s65 offen' % srd(SWS))
    E('v_cmp_eq_u32 vcc, 0, v2')
    E('s_and_saveexec_b64 s[80:81], vcc')
    E('buffer_store_dwordx2 v[8:9], v13, %s, s66 offen' % srd(SWS))
    epilogue(A, name, descs)

def k3(A, descs, wf=''):
    name = 'k3_kernel'
    bufs = [SX, SWO, SWR, SWD, SGW, SWS]
    prologue(A, name, 256, bufs)
    E = A.E
    E('v_lshrrev_b32 v1, 6, v0')
    E('v_and_b32 v2, 63, v0')
    E('v_readfirstlane_b32 s60, v1')
    E('v_lshrrev_b32 v3, 4, v2')
    E('v_and_b32 v4, 15, v2')
    E('s_lshr_b32 s61, s2, 3')
    E('s_and_b32 s62, s2, 7')
    E('s_lshl_b32 s63, s61, 7')
    E('s_lshr_b32 s64, s62, 1')
    E('s_lshl_b32 s64, s64, 5')
    E('s_add_u32 s63, s63, s64')
    E('s_and_b32 s64, s62, 1')
    E('s_lshl_b32 s64, s64, 2')
    E('s_add_u32 s63, s63, s64')
    E('s_lshl_b32 s63, s63, 11')
    E('s_lshl_b32 s64, s60, 8')
    E('s_add_u32 s63, s63, s64')
    E('s_add_u32 s65, s63, 4096')
    E('v_lshlrev_b32 v5, 14, v3')
    E('v_lshl_add_u32 v5, v4, 4, v5')
    E('s_mul_i32 s66, s2, 28672')
    E('s_add_u32 s66, s66, s64')
    E('s_add_u32 s67, s66, 8192'); E('s_add_u32 s68, s66, 16384'); E('s_add_u32 s69, s66, 24576')
    E('v_lshlrev_b32 v6, 11, v3')
    E('v_lshl_add_u32 v6, v4, 4, v6')
    E('v_mov_b32 v8, 0x7f000000')
    E('v_cmp_gt_u32 vcc, 2, v3')
    E('v_cndmask_b32 v7, v8, v6, vcc')
    E('v_lshlrev_b32 v9, 4, v4')
    srd_ready(A, bufs)
    WB = 64
    E('buffer_load_dwordx4 v[%d:%d], v5, %s, s63 offen' % (WB, WB + 3, srd(SWO)) + ' ' + wf, 'w')
    E('buffer_load_dwordx4 v[%d:%d], v5, %s, s63 offen offset:2048' % (WB + 4, WB + 7, srd(SWO)) + ' ' + wf, 'w')
    E('buffer_load_dwordx4 v[%d:%d], v5, %s, s65 offen' % (WB + 8, WB + 11, srd(SWO)) + ' ' + wf, 'w')
    E('buffer_load_dwordx4 v[%d:%d], v5, %s, s65 offen offset:2048' % (WB + 12, WB + 15, srd(SWO)) + ' ' + wf, 'w')
    E('buffer_load_dwordx4 v[%d:%d], v6, %s, s66 offen' % (WB + 16, WB + 19, srd(SWD)) + ' ' + wf, 'w')
    E('buffer_load_dwordx4 v[%d:%d], v6, %s, s67 offen' % (WB + 20, WB + 23, srd(SWD)) + ' ' + wf, 'w')
    E('buffer_load_dwordx4 v[%d:%d], v6, %s, s68 offen' % (WB + 24, WB + 27, srd(SWD)) + ' ' + wf, 'w')
    E('buffer_load_dwordx4 v[%d:%d], v7, %s, s69 offen' % (WB + 28, WB + 31, srd(SWD)) + ' ' + wf, 'w')
    E('buffer_load_dwordx4 v[%d:%d], v9, %s, s64 offen' % (WB + 32, WB + 35, srd(SX)), 'w')
    E('s_mov_b32 s78, %s' % f2h(CEXP))
    E('s_cmp_eq_u32 s60, 0'); E('s_cbranch_scc1 k3_comb')
    E('s_cmp_eq_u32 s60, 1'); E('s_cbranch_scc1 k3_h')
    E('s_cmp_eq_u32 s60, 2'); E('s_cbranch_scc1 k3_sc')
    E('s_branch k3_join')
    A.label('k3_comb')
    vm_save = list(A.vm)
    E('v_lshrrev_b32 v10, 2, v2')
    E('v_and_b32 v11, 3, v2')
    E('v_lshlrev_b32 v12, 12, v10')
    E('v_lshl_add_u32 v12, v11, 4, v12')
    E('v_lshlrev_b32 v13, 6, v10')
    E('s_lshr_b32 s70, s61, 3'); E('s_lshl_b32 s70, s70, 9'); E('s_and_b32 s71, s61, 7'); E('s_add_u32 s70, s70, s71')
    E('s_lshl_b32 s71, s70, 9'); E('s_lshl_b32 s72, s62, 6'); E('s_add_u32 s71, s71, s72'); E('s_add_u32 s71, s71, 0x%x' % AP)
    E('s_add_u32 s72, s71, 0x10000'); E('s_add_u32 s73, s71, 0x20000'); E('s_add_u32 s74, s71, 0x30000')
    E('s_lshl_b32 s75, s70, 3'); E('s_add_u32 s75, s75, 0x%x' % ML)
    for r in range(4):
        E('buffer_load_dwordx2 v[%d:%d], v13, %s, s75 offen offset:%d' % (16 + 2 * r, 17 + 2 * r, srd(SWS), 1024 * r), 'c')
    for r in range(4):
        E('buffer_load_dwordx4 v[%d:%d], v12, %s, s%d offen' % (24 + 4 * r, 27 + 4 * r, srd(SWS), 71 + r), 'c')
    A.wait_vm_all()
    E('v_max3_f32 v14, v16, v18, v20')
    E('v_max_f32 v14, v14, v22')
    xlane(A, 'v_max_f32', 14, 15, [2, 3, 4, 5])
    for r in range(4):
        E('v_sub_f32 v%d, v%d, v14' % (40 + r, 16 + 2 * r))
        E('v_mul_f32 v%d, s78, v%d' % (40 + r, 40 + r))
    for r in range(4):
        E('v_exp_f32 v%d, v%d' % (40 + r, 40 + r))
    E('v_mul_f32 v45, v40, v17')
    for q in range(4):
        E('v_mul_f32 v%d, v40, v%d' % (46 + q, 24 + q))
    for r in range(1, 4):
        E('v_fmac_f32 v45, v%d, v%d' % (40 + r, 17 + 2 * r))
        for q in range(4):
            E('v_fmac_f32 v%d, v%d, v%d' % (46 + q, 40 + r, 24 + 4 * r + q))
    for q in range(5):
        xlane(A, 'v_add_f32', 45 + q, 15, [2, 3, 4, 5])
    E('v_rcp_f32 v45, v45')
    for q in range(4):
        E('v_mul_f32 v%d, v%d, v45' % (46 + q, 46 + q))
    for q in range(4):
        bf16r(A, 46 + q)
    E('v_lshlrev_b32 v11, 4, v11')
    E('ds_write_b128 v11, v[46:49]')
    E('s_branch k3_join')
    A.label('k3_h')
    A.vm = list(vm_save)
    E('v_lshrrev_b32 v10, 2, v2')
    E('v_and_b32 v11, 3, v2')
    E('v_mul_u32_u24 v12, 28672, v11')
    E('v_lshl_add_u32 v12, v10, 2, v12')
    E('s_mul_i32 s70, s2, 56')
    E('s_add_u32 s70, s70, 0x%x' % GU)
    E('s_add_u32 s71, s70, 14336')
    E('buffer_load_dword v16, v12, %s, s70 offen' % srd(SWS), 'c')
    E('buffer_load_dword v17, v12, %s, s71 offen' % srd(SWS), 'c')
    A.wait_vm_all()
    xlane(A, 'v_add_f32', 16, 15, [0, 1])
    xlane(A, 'v_add_f32', 17, 15, [0, 1])
    bf16r(A, 16); bf16r(A, 17)
    sigmoid(A, 18, 16)
    E('v_mul_f32 v18, v18, v16')
    bf16r(A, 18)
    E('v_mul_f32 v18, v18, v17')
    bf16r(A, 18)
    E('v_cmp_gt_u32 vcc, 56, v2')
    E('v_cndmask_b32 v18, 0, v18, vcc')
    E('v_lshlrev_b32 v10, 2, v10')
    E('ds_write_b32 v10, v18 offset:64')
    E('s_branch k3_join')
    A.label('k3_sc')
    A.vm = list(vm_save)
    E('v_lshlrev_b32 v10, 5, v2')
    for i, b in enumerate([SX, SGW, SWR]):
        E('buffer_load_dwordx4 v[%d:%d], v10, %s, 0 offen' % (16 + 8 * i, 19 + 8 * i, srd(b)), 'c')
        E('buffer_load_dwordx4 v[%d:%d], v10, %s, 0 offen offset:16' % (20 + 8 * i, 23 + 8 * i, srd(b)), 'c')
    A.wait_vm_all()
    E('v_mov_b32 v40, 0'); E('v_mov_b32 v41, 0')
    for e in range(8):
        E('v_lshlrev_b32 v42, 16, v%d' % (16 + e)); E('v_and_b32 v43, 0xffff0000, v%d' % (16 + e))
        E('v_lshlrev_b32 v44, 16, v%d' % (24 + e)); E('v_and_b32 v45, 0xffff0000, v%d' % (24 + e))
        E('v_lshlrev_b32 v46, 16, v%d' % (32 + e)); E('v_and_b32 v47, 0xffff0000, v%d' % (32 + e))
        E('v_fmac_f32 v40, v42, v44'); E('v_fmac_f32 v40, v43, v45')
        E('v_fmac_f32 v41, v42, v46'); E('v_fmac_f32 v41, v43, v47')
    xlane(A, 'v_add_f32', 40, 15, [0, 1, 2, 3, 4, 5])
    xlane(A, 'v_add_f32', 41, 15, [0, 1, 2, 3, 4, 5])
    bf16r(A, 40); bf16r(A, 41)
    sigmoid(A, 42, 40); bf16r(A, 42)
    sigmoid(A, 43, 41); bf16r(A, 43)
    E('v_sub_f32 v44, 1.0, v42'); bf16r(A, 44)
    E('v_mul_f32 v43, v43, v44')
    E('v_mov_b32 v45, 0')
    E('v_mov_b32 v10, 128')
    E('ds_write_b128 v10, v[42:45]')
    A.label('k3_join')
    A.vm = list(vm_save)
    A.flush_hist()
    E('s_waitcnt lgkmcnt(0)')
    E('s_barrier')
    E('v_lshlrev_b32 v10, 2, v3')
    for i in range(8):
        E('ds_read_b32 v%d, v10 offset:%d' % (16 + i, 16 * i))
    E('v_mov_b32 v11, 128')
    E('ds_read_b128 v[24:27], v11')
    E('s_waitcnt lgkmcnt(0)')
    for i in range(4):
        E('v_mul_f32 v%d, v%d, v24' % (16 + i, 16 + i))
    for i in range(4, 8):
        E('v_mul_f32 v%d, v%d, v25' % (16 + i, 16 + i))
    E('s_cmp_eq_u32 s2, 0')
    E('s_cselect_b32 s70, 1, 0')
    E('v_cmp_gt_u32 vcc, s70, v3')
    E('v_cndmask_b32 v28, 0, v26, vcc')
    A.wait_vm_all()
    gemv_acc(A, 32, [WB + 4 * i for i in range(9)], ['v%d' % (16 + i) for i in range(8)] + ['v28'], 40)
    reduce8_rows(A, 32)
    E('v_lshlrev_b32 v10, 3, v3')
    E('v_lshl_add_u32 v10, v4, 5, v10')
    E('s_lshl_b32 s70, s2, 12')
    E('s_lshl_b32 s71, s60, 9')
    E('s_add_u32 s70, s70, s71')
    E('s_add_u32 s70, s70, 0x%x' % ZP)
    E('buffer_store_dwordx2 v[32:33], v10, %s, s70 offen' % srd(SWS))
    epilogue(A, name, descs)

def k4(A, descs):
    name = 'k4_kernel'
    bufs = [SOUT, SWS]
    prologue(A, name, 256, bufs)
    E = A.E
    E('v_lshlrev_b32 v1, 12, v0')
    E('s_lshl_b32 s60, s2, 4')
    E('s_add_u32 s60, s60, 0x%x' % ZP)
    E('s_add_u32 s61, s60, 0x40000'); E('s_add_u32 s62, s60, 0x80000'); E('s_add_u32 s63, s60, 0xc0000')
    srd_ready(A, bufs)
    for i in range(4):
        E('buffer_load_dwordx4 v[%d:%d], v1, %s, s%d offen' % (8 + 4 * i, 11 + 4 * i, srd(SWS), 60 + i), 'z')
    A.wait_vm_all()
    for q in range(4):
        E('v_add_f32 v%d, v%d, v%d' % (8 + q, 8 + q, 12 + q))
        E('v_add_f32 v%d, v%d, v%d' % (16 + q, 16 + q, 20 + q))
    for q in range(4):
        E('v_add_f32 v%d, v%d, v%d' % (8 + q, 8 + q, 16 + q))
    E('v_permlane32_swap_b32 v8, v10'); E('v_permlane32_swap_b32 v9, v11')
    E('v_add_f32 v8, v8, v10'); E('v_add_f32 v9, v9, v11')
    E('v_permlane16_swap_b32 v8, v9')
    E('v_add_f32 v8, v8, v9')
    xlane(A, 'v_add_f32', 8, 15, [0, 1, 2, 3])
    E('v_cvt_pk_bf16_f32 v8, v8, v8')
    E('v_lshrrev_b32 v2, 4, v0')
    E('v_lshlrev_b32 v2, 1, v2')
    E('s_lshl_b32 s60, s2, 3')
    E('v_and_b32 v3, 15, v0')
    E('v_cmp_eq_u32 vcc, 0, v3')
    E('s_and_saveexec_b64 s[80:81], vcc')
    E('buffer_store_short v8, v2, %s, s60 offen' % srd(SOUT))
    epilogue(A, name, descs)

def main(out, ldflag='', wf=''):
    A = Asm()
    hdr = ['; generated by gen/gen_base.py (own generator)',
           '; @launch kernel=k1_kernel grid=(256,1,1) block=(512,1,1) lds=8192',
           '; @launch kernel=k2_kernel grid=(256,1,1) block=(512,1,1) lds=40960',
           '; @launch kernel=k3_kernel grid=(256,1,1) block=(512,1,1) lds=1024',
           '; @launch kernel=k4_kernel grid=(256,1,1) block=(64,1,1) lds=0',
           '.amdgcn_target "amdgcn-amd-amdhsa--gfx950"', '.text']
    for h in hdr: A.raw(h)
    descs = []
    k1(A, descs, wf); k2(A, descs, ldflag); k3(A, descs, wf); k4(A, descs)
    A.raw('.section .rodata,"a"')
    for name, nv, ns in descs:
        nv4 = (nv + 3) // 4 * 4
        A.raw('.p2align 6')
        A.raw('.amdhsa_kernel %s' % name)
        A.raw('  .amdhsa_next_free_vgpr %d' % nv4)
        A.raw('  .amdhsa_next_free_sgpr %d' % max(ns, 16))
        A.raw('  .amdhsa_accum_offset %d' % nv4)
        A.raw('  .amdhsa_group_segment_fixed_size 0')
        A.raw('  .amdhsa_kernarg_size 112')
        A.raw('  .amdhsa_user_sgpr_count 2')
        A.raw('  .amdhsa_user_sgpr_kernarg_segment_ptr 1')
        A.raw('  .amdhsa_system_sgpr_workgroup_id_x 1')
        A.raw('.end_amdhsa_kernel')
    open(out, 'w').write(A.text())

if __name__ == '__main__':
    out = sys.argv[1] if len(sys.argv) > 1 else 'cdna_kernels/%s.s' % NAME
    main(out, sys.argv[2] if len(sys.argv) > 2 else '', sys.argv[3] if len(sys.argv) > 3 else '')
```

```python
import sys, struct
sys.path.insert(0, 'gen')
from asmlib import Asm

NAME = 'gated_mix__gqa_block_cached__moe_arch_mod__decode'
KN = NAME + '_kernel'
SX, SK, SV, SWQ, SWO, SWR, SWG, SWU, SWD, SGW, SOUT, SDBG, SWS = 8, 12, 16, 20, 24, 28, 32, 36, 40, 44, 48, 52, 56
KARG = {SX: (0, 2048), SK: (8, 0x4000000), SV: (16, 0x4000000), SWQ: (24, 0x800000), SWO: (32, 0x800000),
        SWR: (48, 2048), SWG: (56, 0x700000), SWU: (64, 0x700000), SWD: (72, 0x700000), SGW: (80, 2048),
        SOUT: (88, 2048), SDBG: (96, 256), SWS: (104, 0x10000000)}
QP, GU, ML, AP, ZI = 0x0, 0x10000, 0x30000, 0x40000, 0x140000
TR = 0x300000
C_P1, C_S1, C_Q, C_M, C_L, C_O, C_TRIG, C_C, C_P2 = 0, 4, 8, 12, 16, 20, 24, 28, 32
MX, LS, P1, QL, CB, OL = 64, 96, 256, 1024, 3328, 4096
LDS_BYTES = OL + 8 * 4224
LOG2E = 1.4426950408889634
CEXP = 0.08838834764831845 * LOG2E
FULL = 'row_mask:0xf bank_mask:0xf'
IDQ = 'quad_perm:[0,1,2,3] row_mask:0xf'

def f2h(x):
    return '0x%08x' % struct.unpack('<I', struct.pack('<f', x))[0]
def srd(b): return 's[%d:%d]' % (b, b + 3)
def v4(a): return 'v[%d:%d]' % (a, a + 3)
def v2(a): return 'v[%d:%d]' % (a, a + 1)

class P:
    kv = 'nt'; wf = 'nt'; kpre = 0; prio = 3; prio2 = 3; prio3 = 3; trigpos = 7; trign = 8; trace = 0; nres = 32; depth = 8

def load_srds(A, bufs):
    for b in bufs:
        A.E('s_load_dwordx2 s[%d:%d], s[0:1], %d' % (b, b + 1, KARG[b][0]))
def srd_consts(A, bufs):
    for b in bufs:
        A.E('s_mov_b32 s%d, 0x%x' % (b + 2, KARG[b][1]))
        A.E('s_mov_b32 s%d, 0x00020000' % (b + 3))
def srd_fix(A, bufs):
    for b in bufs:
        A.E('s_and_b32 s%d, s%d, 0xffff' % (b + 1, b + 1))

def xlane(A, op, r, tmp, bits):
    for b in bits:
        if b < 4:
            mod = ['quad_perm:[1,0,3,2]', 'quad_perm:[2,3,0,1]', 'row_ror:4', 'row_ror:8'][b]
            A.E('%s_dpp v%d, v%d, v%d %s %s' % (op, r, r, r, mod, FULL))
        else:
            A.E('v_mov_b32 v%d, v%d' % (tmp, r))
            A.E('v_permlane%d_swap_b32 v%d, v%d' % (16 if b == 4 else 32, r, tmp))
            A.E('%s v%d, v%d, v%d' % (op, r, r, tmp))
def xlane_multi(A, op, regs, bits):
    for b in bits:
        mod = ['quad_perm:[1,0,3,2]', 'quad_perm:[2,3,0,1]', 'row_ror:4', 'row_ror:8'][b]
        for r in regs:
            A.E('%s_dpp v%d, v%d, v%d %s %s' % (op, r, r, r, mod, FULL))
def bf16r(A, r):
    A.E('v_cvt_pk_bf16_f32 v%d, v%d, v%d' % (r, r, r))
    A.E('v_lshlrev_b32 v%d, 16, v%d' % (r, r))
def sigmoid(A, dst, src):
    A.E('v_mul_f32 v%d, %s, v%d' % (dst, f2h(-LOG2E), src))
    A.E('v_exp_f32 v%d, v%d' % (dst, dst))
    A.E('v_add_f32 v%d, 1.0, v%d' % (dst, dst))
    A.E('v_rcp_f32 v%d, v%d' % (dst, dst))

SCNT, SGC, STMP = 90, 91, 92

def spin(A, name, off, target, vz, vt, extra=None):
    A.label(name)
    A.E('ds_read_b32 v%d, v%d offset:%d' % (vt, vz, off))
    if extra: extra()
    A.E('s_waitcnt lgkmcnt(0)')
    A.E('v_readfirstlane_b32 s%d, v%d' % (STMP, vt))
    A.E('s_cmp_ge_u32 s%d, %d' % (STMP, target))
    A.E('s_cbranch_scc1 %s_d' % name)
    A.E('s_sub_u32 s%d, s%d, 1' % (SCNT, SCNT))
    A.E('s_cbranch_scc0 %s' % name)
    A.E('s_endpgm')
    A.label(name + '_d')

def bump(A, off, vz, vone):
    A.E('s_mov_b64 exec, 1')
    A.E('ds_add_u32 v%d, v%d offset:%d' % (vz, vone, off))
    A.E('s_mov_b64 exec, -1')

def poll(A, name, loads, regs, vt):
    A.label(name)
    for l in loads: A.E(l)
    A.E('s_waitcnt vmcnt(0)')
    A.vm = []
    rs = list(regs)
    A.E('v_max3_u32 v%d, v%d, v%d, v%d' % (vt, rs[0], rs[1], rs[2])); rs = rs[3:]
    while len(rs) >= 2:
        A.E('v_max3_u32 v%d, v%d, v%d, v%d' % (vt, vt, rs[0], rs[1])); rs = rs[2:]
    if rs: A.E('v_max_u32 v%d, v%d, v%d' % (vt, vt, rs[0]))
    A.E('v_cmp_eq_u32 vcc, -1, v%d' % vt)
    A.E('s_cbranch_vccz %s_d' % name)
    A.E('s_sub_u32 s%d, s%d, 1' % (SGC, SGC))
    A.E('s_cbranch_scc0 %s' % name)
    A.E('s_endpgm')
    A.label(name + '_d')

TRS = []
def trace(A, idx):
    if not P.trace: return
    A.E('s_memrealtime s[94:95]')
    A.E('s_waitcnt lgkmcnt(0)')
    A.E('s_mov_b32 s%d, s94' % TRS[idx])

def trace_dump(A, n, va, vb):
    if not P.trace: return
    A.E('s_mov_b64 exec, -1')
    A.E('v_mov_b32 v%d, 0' % va)
    for i in range(n):
        A.E('v_writelane_b32 v%d, s%d, %d' % (va, TRS[i], i))
    A.E('s_mul_i32 s93, s61, 12')
    A.E('s_add_u32 s93, s93, s60')
    A.E('s_lshl_b32 s93, s93, 6')
    A.E('s_add_u32 s93, s93, 0x%x' % TR)
    A.E('v_lshlrev_b32 v%d, 2, v0' % vb)
    A.E('s_mov_b64 exec, 0xffff')
    A.E('buffer_store_dword v%d, v%d, %s, s93 offen' % (va, vb, srd(SWS)))

def attention(A):
    E = A.E
    WT = 's_waitcnt vmcnt(%d)' % (P.depth - 1)
    SLOT = lambda k: 8 + 4 * k
    QB0, QB2, D0, S0 = 136, 140, 144, 160
    PB0, PB1, AT, OA = 76, 84, 96, 136
    Sreg = lambda p: (S0 + p) if p < 8 else (8 + 8 * p)
    kslot = lambda i: 2 * (8 * (i >> 4) + (i & 7)) + ((i >> 3) & 1)
    bufs = [SK, SV, SWS]
    TRS[:] = list(range(79, 90))
    trace(A, 0)
    load_srds(A, bufs)
    srd_consts(A, bufs)
    E('v_and_b32 v1, 15, v0')
    E('v_lshrrev_b32 v2, 4, v0')
    E('v_bfe_u32 v3, v0, 2, 2')
    E('v_lshlrev_b32 v3, 8, v3')
    E('v_lshl_add_u32 v3, v2, 6, v3')
    E('v_and_b32 v6, 3, v0')
    E('v_lshl_add_u32 v3, v6, 4, v3')
    E('v_lshlrev_b32 v4, 4, v0')
    E('v_mov_b32 v5, 0')
    E('s_lshl_b32 s64, s61, 18')
    E('s_lshl_b32 s62, s60, 12')
    E('s_add_u32 s64, s64, s62')
    for k in range(1, 8):
        E('s_add_u32 s%d, s64, %d' % (64 + k, 32768 * k))
    E('s_cmp_lg_u32 s60, 0')
    E('s_cbranch_scc1 a_noinit')
    E('v_lshrrev_b32 v6, 1, v0')
    E('v_cmp_eq_u32 vcc, 2, v6')
    E('v_mov_b32 v7, 0xff800000')
    E('v_cndmask_b32 v136, 0, v7, vcc')
    E('v_mov_b32 v137, v136'); E('v_mov_b32 v138, v136'); E('v_mov_b32 v139, v136')
    E('ds_write_b128 v4, v[136:139]')
    A.label('a_noinit')
    E('s_waitcnt lgkmcnt(0)')
    srd_fix(A, bufs)
    def ldK(i):
        b = SLOT(kslot(i))
        E('buffer_load_dwordx4 %s, v3, %s, s%d offen offset:%d %s' % (v4(b), srd(SK), 64 + (i >> 2), 1024 * (i & 3), P.kv))
    def ldV(i):
        b = SLOT(i & 15)
        E('buffer_load_dwordx4 %s, v4, %s, s%d offen offset:%d %s' % (v4(b), srd(SV), 64 + (i >> 2), 1024 * (i & 3), P.kv))
    for i in range(P.kpre): ldK(i)
    E('s_barrier')
    trace(A, 1)
    E('s_mov_b32 s76, 0x05040100'); E('s_mov_b32 s77, 0x07060302')
    E('s_mov_b32 s78, %s' % f2h(CEXP))
    E('v_and_b32 v6, 7, v1')
    E('v_mul_u32_u24 v144, 272, v6')
    E('v_lshrrev_b32 v7, 3, v1')
    E('v_lshl_add_u32 v7, v2, 2, v7')
    E('v_lshl_add_u32 v144, v7, 4, v144')
    E('v_lshlrev_b32 v145, 2, v6')
    for i in range(P.kpre, 32):
        if i >= P.depth: E(WT)
        ldK(i)
    trace(A, 2)
    spin(A, 'a_sq', C_Q, 4, 5, 6)
    trace(A, 3)
    E('ds_read_b128 %s, v144 offset:%d' % (v4(QB0), QL))
    E('ds_read_b128 %s, v144 offset:%d' % (v4(QB2), QL + 32))
    E('v_mov_b32 v1, v145')
    E('s_waitcnt lgkmcnt(0)')
    def pair(p):
        sa, sb = SLOT(2 * p), SLOT(2 * p + 1)
        E('v_mfma_f32_16x16x32_bf16 %s, %s, %s, 0' % (v4(D0), v4(sa), v4(QB0)))
        E('v_mfma_f32_16x16x32_bf16 %s, %s, %s, 0' % (v4(D0 + 4), v4(sa), v4(QB2)))
        E('v_mfma_f32_16x16x32_bf16 %s, %s, %s, 0' % (v4(D0 + 8), v4(sb), v4(QB0)))
        E('v_mfma_f32_16x16x32_bf16 %s, %s, %s, 0' % (v4(D0 + 12), v4(sb), v4(QB2)))
        E('v_add_f32 v6, v%d, v%d' % (D0, D0 + 6))
        E('v_add_f32 v7, v%d, v%d' % (D0 + 1, D0 + 7))
        E('v_add_f32_dpp v6, v%d, v%d %s bank_mask:0xc' % (D0 + 9, D0 + 15, IDQ))
        E('v_add_f32_dpp v7, v%d, v%d %s bank_mask:0x3' % (D0 + 8, D0 + 14, IDQ))
        E('v_add_f32_dpp v%d, v7, v6 row_ror:8 %s' % (Sreg(p), FULL))
    for p in range(4): pair(p)
    for k in range(8):
        E(WT)
        ldV(k)
        if k == 0:
            for p in range(4, 9): pair(p)
        else:
            pair(8 + k)
    trace(A, 4)
    S = [Sreg(p) for p in range(16)]
    E('v_max3_f32 v6, v%d, v%d, v%d' % (S[0], S[1], S[2]))
    E('v_max3_f32 v7, v%d, v%d, v%d' % (S[3], S[4], S[5]))
    E('v_max3_f32 v6, v6, v%d, v%d' % (S[6], S[7]))
    E('v_max3_f32 v7, v7, v%d, v%d' % (S[8], S[9]))
    E('v_max3_f32 v6, v6, v%d, v%d' % (S[10], S[11]))
    E('v_max3_f32 v7, v7, v%d, v%d' % (S[12], S[13]))
    E('v_max3_f32 v6, v6, v%d, v%d' % (S[14], S[15]))
    E('v_max_f32 v6, v6, v7')
    E('v_mov_b32 v7, 1')
    E('ds_max_f32 v1, v6 offset:%d' % MX)
    bump(A, C_M, 5, 7)
    for k in range(8, 11):
        E(WT)
        ldV(k)
    spin(A, 'a_sm', C_M, 8, 5, 6, extra=lambda: E('ds_read_b32 v144, v1 offset:%d' % MX))
    trace(A, 5)
    E('v_mul_f32 v144, s78, v144')
    for p in range(16):
        E('v_fma_f32 v%d, v%d, s78, -v144' % (S[p], S[p]))
    for p in range(16):
        E('v_exp_f32 v%d, v%d' % (S[p], S[p]))
    E('v_add_f32 v6, v%d, v%d' % (S[0], S[1]))
    E('v_add_f32 v145, v%d, v%d' % (S[2], S[3]))
    for p in range(4, 16, 2):
        E('v_add_f32 v6, v6, v%d' % S[p])
        E('v_add_f32 v145, v145, v%d' % S[p + 1])
    E('v_add_f32 v6, v6, v145')
    E('ds_add_f32 v1, v6 offset:%d' % LS)
    bump(A, C_L, 5, 7)
    for q in range(4):
        E('v_cvt_pk_bf16_f32 v%d, v%d, v%d' % (PB0 + q, S[2 * q], S[2 * q + 1]))
    for q in range(4):
        E('v_cvt_pk_bf16_f32 v%d, v%d, v%d' % (PB1 + q, S[8 + 2 * q], S[9 + 2 * q]))
    for r in range(32):
        E('v_mov_b32 v%d, 0' % (OA + r))
    for k in range(11, 16):
        E(WT)
        ldV(k)
    E('s_mov_b32 s72, 0')
    trace(A, 6)
    def pv(reg):
        vb = SLOT(8 * reg)
        def perms(e):
            tb = AT + 8 * (e & 1)
            for jj in range(4):
                E('v_perm_b32 v%d, v%d, v%d, s76' % (tb + jj, vb + 4 * (2 * jj + 1) + e, vb + 4 * (2 * jj) + e))
            for jj in range(4):
                E('v_perm_b32 v%d, v%d, v%d, s77' % (tb + 4 + jj, vb + 4 * (2 * jj + 1) + e, vb + 4 * (2 * jj) + e))
        def mf(e):
            tb = AT + 8 * (e & 1)
            for h in range(2):
                d = OA + 4 * (2 * e + h)
                E('v_mfma_f32_16x16x32_bf16 %s, %s, %s, %s' % (v4(d), v4(tb + 4 * h), v4(PB0), v4(d)))
        perms(0)
        for e in range(4):
            if e < 3: perms(e + 1)
            mf(e)
    A.label('a_pv')
    pv(0)
    for k in range(16, 24):
        E(WT)
        ldV(k)
    for q in range(4):
        E('v_mov_b32_dpp v%d, v%d row_ror:8 %s' % (PB0 + q, PB0 + q, FULL))
    pv(1)
    E('s_cmp_eq_u32 s72, 1')
    E('s_cbranch_scc1 a_pvd')
    for k in range(24, 32):
        E(WT)
        ldV(k)
        if k - 24 == P.trigpos:
            bump(A, C_TRIG, 5, 7)
    for q in range(4):
        E('v_mov_b32 v%d, v%d' % (PB0 + q, PB1 + q))
    E('v_mov_b32 v4, 0x7f000000')
    E('s_mov_b32 s72, 1')
    E('s_branch a_pv')
    A.label('a_pvd')
    trace(A, 7)
    E('s_mul_i32 s62, s60, 4224')
    E('v_and_b32 v6, 15, v0')
    E('v_mul_u32_u24 v112, 528, v6')
    E('v_lshl_add_u32 v112, v2, 7, v112')
    E('v_add_u32 v112, s62, v112')
    E('s_mul_i32 s62, s60, 528')
    E('v_lshlrev_b32 v113, 4, v0')
    E('v_add_u32 v113, s62, v113')
    E('v_lshrrev_b32 v114, 2, v0')
    E('v_lshlrev_b32 v114, 12, v114')
    E('v_and_b32 v115, 3, v0')
    E('v_lshl_add_u32 v114, v115, 4, v114')
    E('s_lshr_b32 s62, s61, 6')
    E('s_lshl_b32 s62, s62, 3')
    E('s_add_u32 s62, s62, s60')
    E('s_lshl_b32 s62, s62, 15')
    E('s_and_b32 s63, s61, 63')
    E('s_lshl_b32 s63, s63, 6')
    E('s_add_u32 s62, s62, s63')
    E('s_add_u32 s62, s62, 0x%x' % AP)
    E('s_mov_b32 exec_lo, 0x00ff00ff')
    E('s_mov_b32 exec_hi, 0x00ff00ff')
    for e in range(8):
        E('ds_write_b128 v112, %s offset:%d' % (v4(OA + 4 * e), OL + 16 * e))
    bump(A, C_O, 5, 7)
    spin(A, 'a_so', C_O, 8, 5, 6)
    trace(A, 8)
    E('s_mov_b32 exec_hi, 0')
    R = 72
    for v in range(8):
        E('ds_read_b128 %s, v113 offset:%d' % (v4(R + 4 * v), OL + 4224 * v))
    E('s_waitcnt lgkmcnt(4)')
    for r in range(4):
        E('v_add_f32 v%d, v%d, v%d' % (R + r, R + r, R + 4 + r))
        E('v_add_f32 v%d, v%d, v%d' % (R + 8 + r, R + 8 + r, R + 12 + r))
    E('s_waitcnt lgkmcnt(0)')
    for r in range(4):
        E('v_add_f32 v%d, v%d, v%d' % (R + 16 + r, R + 16 + r, R + 20 + r))
        E('v_add_f32 v%d, v%d, v%d' % (R + 24 + r, R + 24 + r, R + 28 + r))
    for r in range(4):
        E('v_add_f32 v%d, v%d, v%d' % (R + r, R + r, R + 8 + r))
        E('v_add_f32 v%d, v%d, v%d' % (R + 16 + r, R + 16 + r, R + 24 + r))
    for r in range(4):
        E('v_add_f32 v%d, v%d, v%d' % (R + r, R + r, R + 16 + r))
    for r in range(4):
        E('v_min_u32 v%d, -2, v%d' % (R + r, R + r))
    E('buffer_store_dwordx4 %s, v114, %s, s62 offen sc1' % (v4(R), srd(SWS)))
    trace(A, 9)
    trace_dump(A, 10, 116, 117)
    E('s_endpgm')

def service(A):
    E = A.E
    A.hist = []; A.vm = []
    allb = [SX, SWQ, SWS, SDBG, SWG, SWU, SGW, SWR, SWD, SWO, SOUT]
    XC, SC, WQ, WG, WU, SEL, DD, CQ, M1 = 12, 16, 40, 72, 104, 136, 144, 156, 160
    XC2 = 104
    XF, GG, C2, OMG = 164, 165, 166, 167
    TRS[:] = [96, 97, 98, 99, 100, 101, 12, 13, 14, 15, 16, 17, 18, 19]
    trace(A, 0)
    load_srds(A, allb)
    if P.prio: E('s_setprio %d' % P.prio)
    srd_consts(A, allb)
    E('v_and_b32 v1, 15, v0')
    E('v_lshrrev_b32 v2, 4, v0')
    E('s_sub_u32 s62, s60, 8')
    E('s_lshr_b32 s63, s61, 6')
    E('s_and_b32 s64, s61, 63')
    E('v_lshrrev_b32 v3, 3, v1')
    E('v_lshlrev_b32 v3, 5, v3')
    E('v_lshl_add_u32 v3, v2, 3, v3')
    E('v_and_b32 v11, 7, v1')
    E('v_lshlrev_b32 v11, 4, v11')
    E('v_lshlrev_b32 v8, 4, v0')
    E('v_mov_b32 v9, 0')
    E('v_mov_b32 v10, 1')
    E('s_lshl_b32 s69, s61, 12')
    E('s_cmp_ge_u32 s62, 2')
    E('s_cbranch_scc1 s_ctl')
    E('s_lshr_b32 s65, s64, 4')
    E('s_lshl_b32 s65, s65, 8')
    E('s_lshl_b32 s66, s62, 7')
    E('s_add_u32 s65, s65, s66')
    E('v_add_u32 v4, s65, v3')
    E('v_lshlrev_b32 v6, 1, v4')
    E('s_lshl_b32 s66, s63, 11')
    E('s_and_b32 s67, s64, 15')
    E('s_lshl_b32 s67, s67, 7')
    E('s_add_u32 s66, s66, s67')
    E('v_lshlrev_b32 v4, 13, v4')
    E('v_add3_u32 v4, v4, v11, s66')
    E('v_add_u32 v5, 0x80000, v4')
    for i in range(1, 8):
        E('s_mov_b32 s%d, %d' % (69 + i, 8192 * i))
    E('s_waitcnt lgkmcnt(0)')
    srd_fix(A, allb)
    E('buffer_load_dwordx4 %s, v6, %s, 0 offen' % (v4(XC), srd(SX)))
    E('buffer_load_dwordx4 %s, v6, %s, 0 offen offset:128' % (v4(XC2), srd(SX)))
    for i in range(16):
        E('buffer_load_dwordx4 %s, v%d, %s, %s offen %s' % (v4(WQ + 4 * i), 4 + (i >> 3), srd(SWQ), ('s%d' % (69 + (i & 7))) if i & 7 else '0', P.wf))
    E('s_barrier')
    def selconst():
        E('v_and_b32 v6, 1, v1')
        E('v_lshlrev_b32 v6, 4, v6')
        E('v_lshlrev_b32_e64 v6, v6, 1')
        E('v_bfe_u32 v7, v1, 1, 2')
        for q in range(4):
            E('v_cmp_eq_u32 vcc, %d, v7' % q)
            E('v_cndmask_b32 v%d, 0, v6, vcc' % (CQ + q))
    def accaddr():
        E('v_and_b32 v6, 1, v2')
        E('v_lshlrev_b32 v6, 7, v6')
        E('v_and_b32 v7, 7, v1')
        E('v_lshl_add_u32 v6, v7, 2, v6')
    selconst()
    accaddr()
    E('s_lshl_b32 s66, s61, 8')
    for i in range(16):
        if i % 2 == 0: E('s_waitcnt vmcnt(%d)' % (14 - i))
        if i == 14: trace(A, 1)
        sb = SEL + 4 * (i & 1)
        xc = (XC if i < 8 else XC2) + ((i & 7) >> 1)
        for q in range(4):
            E('v_mul_u32_u24_sdwa v%d, v%d, v%d dst_sel:DWORD dst_unused:UNUSED_PAD src0_sel:WORD_%d src1_sel:DWORD'
              % (sb + q, xc, CQ + q, i & 1))
        d = DD + 4 * (i & 1)
        E('v_mfma_f32_16x16x32_bf16 %s, %s, %s, %s' % (v4(d), v4(WQ + 4 * i), v4(sb), '0' if i < 2 else v4(d)))
    for r in range(4):
        E('v_add_f32 v%d, v%d, v%d' % (DD + r, DD + r, DD + 4 + r))
    E('s_mov_b32 exec_lo, 0x00ff00ff')
    E('s_mov_b32 exec_hi, 0xff00ff00')
    for r in range(4):
        E('ds_add_f32 v6, v%d offset:%d' % (DD + r, P1 + 32 * r))
    E('s_mov_b64 exec, 1')
    E('ds_add_rtn_u32 v7, v9, v10 offset:%d' % C_P1)
    E('s_mov_b64 exec, -1')
    E('s_waitcnt lgkmcnt(0)')
    E('v_readfirstlane_b32 s87, v7')
    E('s_cmp_lg_u32 s87, 1')
    E('s_cbranch_scc1 s_join')
    spin(A, 's_s0', C_S1, 2, 9, 6, extra=lambda: E('ds_read_b128 %s, v8 offset:%d' % (v4(WQ), P1)))
    for r in range(4):
        E('v_min_u32 v%d, -2, v%d' % (WQ + r, WQ + r))
    E('s_mov_b64 exec, 0xffff')
    E('buffer_store_dwordx4 %s, v8, %s, s66 offen sc1' % (v4(WQ), srd(SWS)))
    bump(A, C_S1, 9, 10)
    E('s_branch s_join')
    A.label('s_ctl')
    A.hist = []
    for r in range(4): E('v_mov_b32 v%d, -1' % (M1 + r))
    E('s_add_u32 s65, s69, 0x%x' % AP)
    E('s_add_u32 s66, s69, 0x%x' % ZI)
    E('s_lshl_b32 s67, s61, 6')
    E('s_add_u32 s67, s67, 0x%x' % ML)
    E('s_mul_i32 s70, s2, %d' % (0x30000 // P.nres))
    E('s_add_u32 s71, s70, 4096')
    E('s_add_u32 s72, s70, 8192')
    E('v_lshlrev_b32 v7, 2, v0')
    E('s_waitcnt lgkmcnt(0)')
    srd_fix(A, allb)
    E('s_cmp_eq_u32 s62, 2')
    E('s_cbranch_scc1 s_c2')
    for i in range(4):
        E('buffer_store_dwordx4 %s, v8, %s, s65 offen offset:%d sc1' % (v4(M1), srd(SWS), 1024 * i))
    E('s_mov_b64 exec, 15')
    E('buffer_store_dwordx4 %s, v8, %s, s67 offen sc1' % (v4(M1), srd(SWS)))
    E('s_mov_b64 exec, -1')
    for i in range(4):
        E('buffer_store_dwordx4 %s, v8, %s, s66 offen offset:%d sc1' % (v4(M1), srd(SWS), 1024 * i))
    E('s_barrier')
    selconst()
    E('s_waitcnt vmcnt(0)')
    trace(A, 1)
    bump(A, C_S1, 9, 10)
    E('s_branch s_join')
    A.label('s_c2')
    A.hist = []
    E('s_cmp_ge_u32 s2, %d' % P.nres)
    E('s_cbranch_scc1 s_c2n')
    for i in range(0x30000 // P.nres // 1024):
        E('buffer_store_dwordx4 %s, v8, %s, s%d offen offset:%d sc1' % (v4(M1), srd(SWS), 70 + (i >> 2), 1024 * (i & 3)))
    A.label('s_c2n')
    E('s_barrier')
    E('s_cmp_ge_u32 s2, %d' % P.nres)
    E('s_cbranch_scc1 s_c2m')
    E('s_mov_b64 exec, 1')
    E('s_waitcnt vmcnt(0)')
    E('buffer_store_byte v10, v9, %s, s2 offen sc1' % srd(SDBG))
    E('s_mov_b64 exec, -1')
    A.label('s_c2m')
    E('s_mov_b64 exec, 0x%x' % ((1 << (P.nres // 4)) - 1))
    A.label('s_pf')
    E('buffer_load_dword v6, v7, %s, 0 offen sc1' % srd(SDBG))
    E('s_waitcnt vmcnt(0)')
    E('v_cmp_ne_u32 vcc, 0x01010101, v6')
    E('s_cbranch_vccz s_pf_d')
    E('s_sub_u32 s%d, s%d, 1' % (SGC, SGC))
    E('s_cbranch_scc0 s_pf')
    E('s_endpgm')
    A.label('s_pf_d')
    trace(A, 1)
    bump(A, C_S1, 9, 10)
    selconst()
    A.label('s_join')
    A.hist = []
    trace(A, 2)
    E('s_lshl_b32 s70, s63, 14')
    E('s_lshl_b32 s71, s62, 10')
    E('s_add_u32 s68, s69, s71')
    E('s_add_u32 s68, s68, 0x%x' % AP)
    E('s_add_u32 s70, s70, s71')
    E('s_add_u32 s71, s70, 4096'); E('s_add_u32 s72, s70, 8192'); E('s_add_u32 s73, s70, 12288')
    E('v_lshrrev_b32 v6, 5, v0')
    E('v_mul_u32_u24 v6, 272, v6')
    E('v_and_b32 v7, 31, v0')
    E('v_lshl_add_u32 v4, v7, 3, v6')
    E('s_mul_i32 s76, s62, 544')
    E('v_add_u32 v4, s76, v4')
    E('s_lshl_b32 s65, s63, 8')
    E('s_lshl_b32 s66, s62, 6')
    E('s_add_u32 s65, s65, s66')
    E('v_add_u32 v3, s65, v3')
    E('s_lshl_b32 s66, s64, 7')
    E('v_mul_u32_u24 v5, 0x1c00, v3')
    E('v_add3_u32 v5, v5, v11, s66')
    E('v_lshlrev_b32 v3, 1, v3')
    for i in range(1, 8):
        E('s_mov_b32 s%d, %d' % (76 + i, 7168 * i))
    spin(A, 's_s1', C_S1, 3, 9, 6)
    trace(A, 3)
    poll(A, 's_pq', ['buffer_load_dwordx4 %s, v8, %s, s%d offen sc1' % (v4(40 + 4 * r), srd(SWS), 70 + r) for r in range(4)],
         range(40, 56), 6)
    for r in range(4):
        E('v_add_f32 v%d, v%d, v%d' % (40 + r, 40 + r, 44 + r))
        E('v_add_f32 v%d, v%d, v%d' % (48 + r, 48 + r, 52 + r))
    for r in range(4):
        E('v_add_f32 v%d, v%d, v%d' % (40 + r, 40 + r, 48 + r))
    E('v_cvt_pk_bf16_f32 v40, v40, v41')
    E('v_cvt_pk_bf16_f32 v41, v42, v43')
    E('ds_write_b64 v4, v[40:41] offset:%d' % QL)
    bump(A, C_Q, 9, 10)
    trace(A, 4)
    if P.prio2 != P.prio: E('s_setprio %d' % P.prio2)
    E('s_cmp_ge_u32 s64, 56')
    E('s_cbranch_scc1 s_nogu')
    E('buffer_load_dwordx4 %s, v3, %s, 0 offen' % (v4(XC), srd(SX)))
    for i in range(8):
        E('buffer_load_dwordx4 %s, v5, %s, %s offen %s' % (v4(WG + 4 * i), srd(SWG), ('s%d' % (76 + i)) if i else '0', P.wf))
    for i in range(8):
        E('buffer_load_dwordx4 %s, v5, %s, %s offen %s' % (v4(WU + 4 * i), srd(SWU), ('s%d' % (76 + i)) if i else '0', P.wf))
    A.label('s_nogu')
    E('v_lshlrev_b32 v7, 5, v0')
    for i, b in enumerate([SX, SGW, SWR]):
        E('buffer_load_dwordx4 %s, v7, %s, 0 offen' % (v4(SC + 8 * i), srd(b)))
        E('buffer_load_dwordx4 %s, v7, %s, 0 offen offset:16' % (v4(SC + 8 * i + 4), srd(b)))
    E('s_lshr_b32 s85, s61, 5')
    E('s_lshl_b32 s85, s85, 8')
    E('s_bfe_u32 s86, s61, 0x20003')
    E('s_lshl_b32 s86, s86, 6')
    E('s_add_u32 s85, s85, s86')
    E('s_and_b32 s86, s61, 7')
    E('s_lshl_b32 s86, s86, 1')
    E('s_add_u32 s85, s85, s86')
    E('v_lshlrev_b32 v3, 4, v2')
    E('buffer_load_ushort v%d, v3, %s, s85 offen' % (XF, srd(SX)))
    E('s_cmp_ge_u32 s64, 56')
    E('s_cbranch_scc1 s_nogu2')
    accaddr()
    E('s_mul_i32 s67, s63, 28672')
    E('s_lshl_b32 s66, s64, 8')
    E('s_add_u32 s66, s66, s67')
    E('s_add_u32 s66, s66, 0x%x' % GU)
    E('v_mul_u32_u24 v4, 14336, v2')
    E('v_lshl_add_u32 v4, v1, 4, v4')
    E('s_waitcnt vmcnt(7)')
    for i in range(8):
        sb = SEL + 4 * (i & 1)
        for q in range(4):
            E('v_mul_u32_u24_sdwa v%d, v%d, v%d dst_sel:DWORD dst_unused:UNUSED_PAD src0_sel:WORD_%d src1_sel:DWORD'
              % (sb + q, XC + (i >> 1), CQ + q, i & 1))
        for mat, wb in enumerate([WG, WU]):
            d = DD + 4 * mat
            E('v_mfma_f32_16x16x32_bf16 %s, %s, %s, %s' % (v4(d), v4(wb + 4 * i), v4(sb), '0' if i == 0 else v4(d)))
    E('s_mov_b32 exec_lo, 0x00ff00ff')
    E('s_mov_b32 exec_hi, 0xff00ff00')
    for mat in range(2):
        for r in range(4):
            E('ds_add_f32 v6, v%d offset:%d' % (DD + 4 * mat + r, P1 + 256 * (mat + 1) + 32 * r))
    E('s_mov_b64 exec, 1')
    E('ds_add_rtn_u32 v7, v9, v10 offset:%d' % C_P2)
    E('s_mov_b64 exec, -1')
    E('s_waitcnt lgkmcnt(0)')
    E('v_readfirstlane_b32 s87, v7')
    E('s_cmp_lg_u32 s87, 3')
    E('s_cbranch_scc1 s_nogu2')
    E('s_mov_b32 exec_hi, 0')
    E('ds_read_b128 %s, v8 offset:%d' % (v4(WQ), P1 + 256))
    E('s_waitcnt lgkmcnt(0)')
    for r in range(4):
        E('v_min_u32 v%d, -2, v%d' % (WQ + r, WQ + r))
    E('buffer_store_dwordx4 %s, v4, %s, s66 offen sc1' % (v4(WQ), srd(SWS)))
    E('s_mov_b64 exec, -1')
    A.label('s_nogu2')
    A.hist = []
    E('s_waitcnt vmcnt(0)')
    trace(A, 5)
    E('v_mov_b32 v%d, 0' % GG); E('v_mov_b32 v%d, 0' % C2)
    for e in range(8):
        E('v_dot2c_f32_bf16 v%d, v%d, v%d' % (GG, SC + e, SC + 8 + e))
    for e in range(8):
        E('v_dot2c_f32_bf16 v%d, v%d, v%d' % (C2, SC + e, SC + 16 + e))
    xlane_multi(A, 'v_add_f32', [GG, C2], [0, 1, 2, 3])
    xlane(A, 'v_add_f32', GG, 6, [4, 5])
    xlane(A, 'v_add_f32', C2, 7, [4, 5])
    bf16r(A, GG); bf16r(A, C2)
    sigmoid(A, GG, GG); bf16r(A, GG)
    sigmoid(A, C2, C2); bf16r(A, C2)
    E('v_sub_f32 v%d, 1.0, v%d' % (OMG, GG)); bf16r(A, OMG)
    E('v_mul_f32 v%d, v%d, v%d' % (C2, C2, OMG))
    E('v_lshlrev_b32 v%d, 16, v%d' % (XF, XF))
    E('v_mul_f32 v%d, v%d, v%d' % (XF, XF, OMG))
    E('v_and_b32 v6, 12, v1')
    E('v_add_u32 v6, v6, v2')
    E('v_cmp_gt_u32 s[88:89], 14, v6')
    E('v_min_u32 v6, 13, v6')
    E('v_and_b32 v7, 3, v1')
    E('v_mul_u32_u24 v7, 28672, v7')
    E('v_lshl_add_u32 v15, v6, 2, v7')
    E('s_mul_i32 s70, s61, 56')
    E('s_add_u32 s70, s70, 0x%x' % GU)
    E('s_add_u32 s71, s70, 14336')
    E('v_lshlrev_b32 v6, 11, v2')
    E('v_lshl_add_u32 v12, v1, 4, v6')
    E('v_mov_b32 v7, 0x7f000000')
    E('v_cmp_gt_u32 vcc, 2, v2')
    E('v_cndmask_b32 v13, v7, v12, vcc')
    E('s_mul_i32 s76, s61, 28672')
    E('s_lshl_b32 s77, s62, 9')
    E('s_add_u32 s76, s76, s77')
    E('s_add_u32 s78, s76, 8192'); E('s_add_u32 s79, s76, 16384'); E('s_add_u32 s80, s76, 24576')
    E('s_lshr_b32 s81, s61, 3')
    E('s_lshl_b32 s81, s81, 7')
    E('s_bfe_u32 s82, s61, 0x20001')
    E('s_lshl_b32 s82, s82, 5')
    E('s_add_u32 s81, s81, s82')
    E('s_and_b32 s82, s61, 1')
    E('s_lshl_b32 s82, s82, 2')
    E('s_add_u32 s81, s81, s82')
    E('s_lshl_b32 s81, s81, 11')
    E('s_add_u32 s81, s81, s77')
    E('s_add_u32 s82, s81, 16384'); E('s_add_u32 s83, s81, 32768'); E('s_add_u32 s84, s81, 49152')
    WD, WO, HS, OS = 40, 72, 104, 120
    wdso = ['s76', 's78', 's79', 's80']
    woso = ['s81', 's82', 's83', 's84']
    def ld_wd():
        for rg in range(4):
            for c2 in range(2):
                E('buffer_load_dwordx4 %s, v%d, %s, %s offen offset:%d %s' % (v4(WD + 8 * rg + 4 * c2), 13 if rg == 3 else 12, srd(SWD), wdso[rg], 256 * c2, P.wf))
    def ld_wo():
        for rg in range(4):
            for c2 in range(2):
                E('buffer_load_dwordx4 %s, v12, %s, %s offen offset:%d %s' % (v4(WO + 8 * rg + 4 * c2), srd(SWO), woso[rg], 256 * c2, P.wf))
    ZL, ZH = 144, 148
    E('s_lshl_b32 s65, s63, 12')
    E('s_lshl_b32 s66, s64, 3')
    E('s_add_u32 s65, s65, s66')
    E('s_add_u32 s65, s65, 0x%x' % ML)
    E('s_lshr_b32 s66, s61, 3')
    E('s_lshl_b32 s66, s66, 9')
    E('s_add_u32 s66, s66, 0x%x' % ML)
    for i in range(4):
        E('s_add_u32 s%d, s62, %d' % (72 + i, i))
        E('s_and_b32 s%d, s%d, 3' % (72 + i, 72 + i))
        E('s_lshl_b32 s%d, s%d, 7' % (72 + i, 72 + i))
        E('s_add_u32 s%d, s%d, s66' % (72 + i, 72 + i))
    E('v_lshlrev_b32 v4, 2, v0')
    E('v_lshlrev_b32 v5, 9, v0')
    E('v_lshlrev_b32 v14, 3, v1')
    E('s_mov_b32 s86, %s' % f2h(CEXP))
    E('s_cmp_lg_u32 s62, 0')
    E('s_cbranch_scc1 s_nml')
    spin(A, 's_sl', C_L, 8, 9, 6)
    E('s_mov_b64 exec, 0xff')
    E('ds_read2_b32 v[16:17], v4 offset0:%d offset1:%d' % (MX // 4, LS // 4))
    E('s_waitcnt lgkmcnt(0)')
    E('v_min_u32 v16, -2, v16')
    E('v_min_u32 v17, -2, v17')
    E('buffer_store_dwordx2 v[16:17], v5, %s, s65 offen sc1' % srd(SWS))
    E('s_mov_b64 exec, -1')
    A.label('s_nml')
    A.hist = []
    trace(A, 6)
    E('v_lshrrev_b32 v6, 3, v1')
    E('v_lshlrev_b32 v6, 2, v6')
    E('v_add_u32 v6, v6, v2')
    E('v_and_b32 v7, 7, v1')
    E('v_lshl_add_u32 v6, v6, 3, v7')
    E('v_lshlrev_b32 v4, 12, v6')
    E('s_lshl_b32 s67, s62, 18')
    E('s_lshl_b32 s66, s61, 4')
    E('s_add_u32 s67, s67, s66')
    E('s_add_u32 s67, s67, 0x%x' % ZI)
    spin(A, 's_st', C_TRIG, P.trign, 9, 6)
    trace(A, 7)
    if P.prio3 != P.prio2: E('s_setprio %d' % P.prio3)
    small = ['buffer_load_dwordx2 %s, v14, %s, s%d offen sc1' % (v2(16 + 2 * i), srd(SWS), 72 + i) for i in range(4)]
    small += ['buffer_load_dword v24, v15, %s, s70 offen sc1' % srd(SWS), 'buffer_load_dword v25, v15, %s, s71 offen sc1' % srd(SWS)]
    for l in small: E(l)
    ld_wd()
    ld_wo()
    E('s_waitcnt vmcnt(16)')
    E('v_max3_u32 v6, v16, v17, v18')
    E('v_max3_u32 v6, v6, v19, v20')
    E('v_max3_u32 v6, v6, v21, v22')
    E('v_max3_u32 v6, v6, v23, v24')
    E('v_max_u32 v6, v6, v25')
    E('v_cmp_eq_u32 vcc, -1, v6')
    E('s_cbranch_vccz s_pml_d')
    poll(A, 's_pml', small, range(16, 26), 6)
    A.hist = []
    xlane_multi(A, 'v_add_f32', [24, 25], [0, 1])
    bf16r(A, 24); bf16r(A, 25)
    sigmoid(A, 26, 24)
    E('v_mul_f32 v26, v26, v24')
    bf16r(A, 26)
    E('v_mul_f32 v26, v26, v25')
    E('v_cvt_pk_bf16_f32 v26, v26, v26')
    E('v_cndmask_b32 v26, 0, v26, s[88:89]')
    for rg in range(4):
        E('v_mov_b32_dpp v%d, v26 row_newbcast:%d %s' % (28 + rg, 4 * rg, FULL))
    for rg in range(4):
        for q in range(4):
            E('v_mul_u32_u24_sdwa v%d, v%d, v%d dst_sel:DWORD dst_unused:UNUSED_PAD src0_sel:WORD_0 src1_sel:DWORD'
              % (HS + 4 * rg + q, 28 + rg, CQ + q))
    E('v_max3_f32 v6, v16, v18, v20')
    E('v_max_f32 v6, v6, v22')
    xlane(A, 'v_max_f32', 6, 7, [0, 1, 2, 3])
    for i in range(4):
        E('v_sub_f32 v%d, v%d, v6' % (32 + i, 16 + 2 * i))
    for i in range(4):
        E('v_mul_f32 v%d, s86, v%d' % (32 + i, 32 + i))
    for i in range(4):
        E('v_exp_f32 v%d, v%d' % (32 + i, 32 + i))
    E('v_mul_f32 v6, v32, v17')
    for i in range(1, 4):
        E('v_fmac_f32 v6, v%d, v%d' % (32 + i, 17 + 2 * i))
    xlane(A, 'v_add_f32', 6, 7, [0, 1, 2, 3])
    E('v_rcp_f32 v6, v6')
    E('v_mul_f32 v11, v32, v6')
    E('v_lshlrev_b32 v14, 6, v1')
    E('v_lshl_add_u32 v14, v2, 4, v14')
    E('s_lshl_b32 s70, s62, 6')
    E('v_add_u32 v15, s70, v3')
    E('s_waitcnt vmcnt(8)')
    for rg in range(4):
        for c2 in range(2):
            d = ZL + 4 * c2
            E('v_mfma_f32_16x16x32_bf16 %s, %s, %s, %s' % (v4(d), v4(WD + 8 * rg + 4 * c2), v4(HS + 4 * rg), '0' if rg == 0 else v4(d)))
    for r in range(4):
        E('v_mul_f32 v%d, v%d, v%d' % (ZL + r, ZL + r, C2))
    for r in range(4):
        E('v_mul_f32_dpp v%d, v%d, v%d %s bank_mask:0xc' % (ZL + r, ZH + r, C2, IDQ))
    spin(A, 's_so', C_O, 8, 9, 6)
    trace(A, 8)
    poll(A, 's_pap', ['buffer_load_dwordx4 v[16:19], v14, %s, s68 offen sc1' % srd(SWS)], range(16, 20), 6)
    trace(A, 9)
    for r in range(4):
        E('v_mul_f32 v%d, v%d, v11' % (16 + r, 16 + r))
    xlane_multi(A, 'v_add_f32', [16, 17, 18, 19], [0, 1, 2, 3])
    E('s_mov_b32 exec_lo, 0x00010001')
    E('s_mov_b32 exec_hi, 0x00010001')
    E('ds_write_b128 v15, v[16:19] offset:%d' % CB)
    bump(A, C_C, 9, 10)
    spin(A, 's_sc', C_C, 4, 9, 6)
    for jj in range(4):
        E('ds_read_b128 %s, v3 offset:%d' % (v4(16 + 4 * jj), CB + 64 * jj))
    E('s_waitcnt lgkmcnt(0)')
    for r in range(4):
        E('v_add_f32 v%d, v%d, v%d' % (16 + r, 16 + r, 20 + r))
        E('v_add_f32 v%d, v%d, v%d' % (24 + r, 24 + r, 28 + r))
    for r in range(4):
        E('v_add_f32 v%d, v%d, v%d' % (16 + r, 16 + r, 24 + r))
    E('v_cvt_pk_bf16_f32 v16, v16, v17')
    E('v_cvt_pk_bf16_f32 v17, v18, v19')
    DL, DH = 148, 152
    for rg in range(4):
        for q in range(4):
            E('v_mul_u32_u24_sdwa v%d, v%d, v%d dst_sel:DWORD dst_unused:UNUSED_PAD src0_sel:WORD_%d src1_sel:DWORD'
              % (OS + 4 * rg + q, 16 + (rg >> 1), CQ + q, rg & 1))
        for c2 in range(2):
            d = DL + 4 * c2
            E('v_mfma_f32_16x16x32_bf16 %s, %s, %s, %s' % (v4(d), v4(WO + 8 * rg + 4 * c2), v4(OS + 4 * rg), '0' if rg == 0 else v4(d)))
    for r in range(4):
        E('v_fmac_f32_dpp v%d, v%d, v%d %s bank_mask:0x3' % (ZL + r, DL + r, GG, IDQ))
    for r in range(4):
        E('v_fmac_f32_dpp v%d, v%d, v%d %s bank_mask:0xc' % (ZL + r, DH + r, GG, IDQ))
    for r in range(4):
        E('v_min_u32 v%d, -2, v%d' % (ZL + r, ZL + r))
    E('buffer_store_dwordx4 %s, v4, %s, s67 offen sc1' % (v4(ZL), srd(SWS)))
    trace(A, 10)
    E('s_cmp_lg_u32 s62, 3')
    E('s_cbranch_scc1 k_fin')
    E('s_add_u32 s69, s69, 0x%x' % ZI)
    poll(A, 's_pz', ['buffer_load_dwordx4 %s, v8, %s, s69 offen offset:%d sc1' % (v4(16 + 4 * i), srd(SWS), 1024 * i) for i in range(4)],
         range(16, 32), 6)
    trace(A, 11)
    for q in range(4):
        E('v_add_f32 v%d, v%d, v%d' % (16 + q, 16 + q, 20 + q))
        E('v_add_f32 v%d, v%d, v%d' % (24 + q, 24 + q, 28 + q))
    for q in range(4):
        E('v_add_f32 v%d, v%d, v%d' % (16 + q, 16 + q, 24 + q))
    E('v_permlane32_swap_b32 v16, v18'); E('v_permlane32_swap_b32 v17, v19')
    E('v_add_f32 v16, v16, v18'); E('v_add_f32 v17, v17, v19')
    E('v_permlane16_swap_b32 v16, v17')
    E('v_add_f32 v16, v16, v17')
    xlane(A, 'v_add_f32', 16, 7, [0, 1, 2, 3])
    E('v_add_f32 v16, v16, v%d' % XF)
    E('v_cvt_pk_bf16_f32 v16, v16, v16')
    E('s_mov_b32 exec_lo, 0x00010001')
    E('s_mov_b32 exec_hi, 0x00010001')
    E('buffer_store_short v16, v3, %s, s85 offen' % srd(SOUT))
    trace(A, 12)
    A.label('k_fin')
    trace_dump(A, 13, 40, 41)

def main(out):
    A = Asm()
    hdr = ['; generated by gen/gen_pers2.py (own generator)',
           '; @launch grid=(256,1,1) block=(768,1,1) lds=%d' % LDS_BYTES,
           '.amdgcn_target "amdgcn-amd-amdhsa--gfx950"', '.text', '.globl ' + KN, '.p2align 8', '.type %s,@function' % KN]
    for h in hdr: A.raw(h)
    A.label(KN)
    E = A.E
    E('s_cmp_ge_u32 s2, 256')
    E('s_cbranch_scc1 k_end')
    E('v_lshrrev_b32 v1, 6, v0')
    E('v_and_b32 v0, 63, v0')
    E('v_readfirstlane_b32 s60, v1')
    E('s_and_b32 s61, s2, 7')
    E('s_lshl_b32 s61, s61, 5')
    E('s_lshr_b32 s62, s2, 3')
    E('s_add_u32 s61, s61, s62')
    E('s_mov_b32 s%d, 0x400000' % SCNT)
    E('s_mov_b32 s%d, 0x20000' % SGC)
    E('s_cmp_ge_u32 s60, 8')
    E('s_cbranch_scc1 k_svc')
    attention(A)
    A.label('k_svc')
    service(A)
    A.label('k_end')
    E('s_endpgm')
    nv = (A.maxv + 7) // 8 * 8
    assert nv <= 168, nv
    A.raw('.section .rodata,"a"')
    A.raw('.p2align 6')
    A.raw('.amdhsa_kernel %s' % KN)
    A.raw('  .amdhsa_next_free_vgpr %d' % nv)
    A.raw('  .amdhsa_next_free_sgpr %d' % max(A.maxs, 16))
    A.raw('  .amdhsa_accum_offset %d' % nv)
    A.raw('  .amdhsa_group_segment_fixed_size 0')
    A.raw('  .amdhsa_kernarg_size 112')
    A.raw('  .amdhsa_user_sgpr_count 2')
    A.raw('  .amdhsa_user_sgpr_kernarg_segment_ptr 1')
    A.raw('  .amdhsa_system_sgpr_workgroup_id_x 1')
    A.raw('.end_amdhsa_kernel')
    open(out, 'w').write(A.text())

if __name__ == '__main__':
    out = sys.argv[1]
    for a in sys.argv[2:]:
        k, v = a.split('=', 1)
        cur = getattr(P, k)
        setattr(P, k, int(v) if isinstance(cur, int) else v.replace('+', ' '))
    main(out)
```

```python
import sys, struct
sys.path.insert(0, 'gen')
from asmlib import Asm

NAME = 'gated_mix__gqa_block_cached__moe_arch_mod__decode'
KN = NAME + '_kernel'
SX, SK, SV, SWQ, SWO, SWR, SWG, SWU, SWD, SGW, SOUT, SDBG, SWS = 8, 12, 16, 20, 24, 28, 32, 36, 40, 44, 48, 52, 56
KARG = {SX: (0, 2048), SK: (8, 0x4000000), SV: (16, 0x4000000), SWQ: (24, 0x800000), SWO: (32, 0x800000),
        SWR: (48, 2048), SWG: (56, 0x700000), SWU: (64, 0x700000), SWD: (72, 0x700000), SGW: (80, 2048),
        SOUT: (88, 2048), SDBG: (96, 256), SWS: (104, 0x10000000)}
QP, GU, ML, AP, ZI = 0x0, 0x10000, 0x30000, 0x40000, 0x140000
TR = 0x300000
C_P1, C_S1, C_Q, C_M, C_L, C_O, C_TRIG, C_C, C_P2 = 0, 4, 8, 12, 16, 20, 24, 28, 32
MX, LS, P1, QL, CB, OL = 64, 96, 256, 1024, 3328, 4096
LDS_BYTES = OL + 8 * 4224
LOG2E = 1.4426950408889634
CEXP = 0.08838834764831845 * LOG2E
FULL = 'row_mask:0xf bank_mask:0xf'
IDQ = 'quad_perm:[0,1,2,3] row_mask:0xf'

def f2h(x):
    return '0x%08x' % struct.unpack('<I', struct.pack('<f', x))[0]
def srd(b): return 's[%d:%d]' % (b, b + 3)
def v4(a): return 'v[%d:%d]' % (a, a + 3)
def v2(a): return 'v[%d:%d]' % (a, a + 1)

class P:
    kv = 'nt'; wf = 'nt'; kpre = 0; prio = 3; prio2 = 3; prio3 = 3; trigpos = 7; trign = 8; trace = 0; rs = 56; depth = 8; d0 = 8; n0 = 0

def load_srds(A, bufs):
    for b in bufs:
        A.E('s_load_dwordx2 s[%d:%d], s[0:1], %d' % (b, b + 1, KARG[b][0]))
def srd_consts(A, bufs):
    for b in bufs:
        A.E('s_mov_b32 s%d, 0x%x' % (b + 2, KARG[b][1]))
        A.E('s_mov_b32 s%d, 0x00020000' % (b + 3))
def srd_fix(A, bufs):
    for b in bufs:
        A.E('s_and_b32 s%d, s%d, 0xffff' % (b + 1, b + 1))

def xlane(A, op, r, tmp, bits):
    for b in bits:
        if b < 4:
            mod = ['quad_perm:[1,0,3,2]', 'quad_perm:[2,3,0,1]', 'row_ror:4', 'row_ror:8'][b]
            A.E('%s_dpp v%d, v%d, v%d %s %s' % (op, r, r, r, mod, FULL))
        else:
            A.E('v_mov_b32 v%d, v%d' % (tmp, r))
            A.E('v_permlane%d_swap_b32 v%d, v%d' % (16 if b == 4 else 32, r, tmp))
            A.E('%s v%d, v%d, v%d' % (op, r, r, tmp))
def xlane_multi(A, op, regs, bits):
    for b in bits:
        mod = ['quad_perm:[1,0,3,2]', 'quad_perm:[2,3,0,1]', 'row_ror:4', 'row_ror:8'][b]
        for r in regs:
            A.E('%s_dpp v%d, v%d, v%d %s %s' % (op, r, r, r, mod, FULL))
def bf16r(A, r):
    A.E('v_cvt_pk_bf16_f32 v%d, v%d, v%d' % (r, r, r))
    A.E('v_lshlrev_b32 v%d, 16, v%d' % (r, r))
def sigmoid(A, dst, src):
    A.E('v_mul_f32 v%d, %s, v%d' % (dst, f2h(-LOG2E), src))
    A.E('v_exp_f32 v%d, v%d' % (dst, dst))
    A.E('v_add_f32 v%d, 1.0, v%d' % (dst, dst))
    A.E('v_rcp_f32 v%d, v%d' % (dst, dst))

SCNT, SGC, STMP = 90, 91, 92

def spin(A, name, off, target, vz, vt, extra=None):
    A.label(name)
    A.E('ds_read_b32 v%d, v%d offset:%d' % (vt, vz, off))
    if extra: extra()
    A.E('s_waitcnt lgkmcnt(0)')
    A.E('v_readfirstlane_b32 s%d, v%d' % (STMP, vt))
    A.E('s_cmp_ge_u32 s%d, %d' % (STMP, target))
    A.E('s_cbranch_scc1 %s_d' % name)
    A.E('s_sub_u32 s%d, s%d, 1' % (SCNT, SCNT))
    A.E('s_cbranch_scc0 %s' % name)
    A.E('s_endpgm')
    A.label(name + '_d')

def bump(A, off, vz, vone):
    A.E('s_mov_b64 exec, 1')
    A.E('ds_add_u32 v%d, v%d offset:%d' % (vz, vone, off))
    A.E('s_mov_b64 exec, -1')

def poll(A, name, loads, regs, vt, pre=None):
    A.label(name)
    for l in loads: A.E(l)
    A.E('s_waitcnt vmcnt(0)')
    A.vm = []
    if pre: pre()
    rs = list(regs)
    A.E('v_max3_u32 v%d, v%d, v%d, v%d' % (vt, rs[0], rs[1], rs[2])); rs = rs[3:]
    while len(rs) >= 2:
        A.E('v_max3_u32 v%d, v%d, v%d, v%d' % (vt, vt, rs[0], rs[1])); rs = rs[2:]
    if rs: A.E('v_max_u32 v%d, v%d, v%d' % (vt, vt, rs[0]))
    A.E('v_cmp_eq_u32 vcc, -1, v%d' % vt)
    A.E('s_cbranch_vccz %s_d' % name)
    A.E('s_sub_u32 s%d, s%d, 1' % (SGC, SGC))
    A.E('s_cbranch_scc0 %s' % name)
    A.E('s_endpgm')
    A.label(name + '_d')

TRS = []
def trace(A, idx):
    if not P.trace: return
    A.E('s_memrealtime s[94:95]')
    A.E('s_waitcnt lgkmcnt(0)')
    A.E('s_mov_b32 s%d, s94' % TRS[idx])

def trace_dump(A, n, va, vb):
    if not P.trace: return
    A.E('s_mov_b64 exec, -1')
    A.E('v_mov_b32 v%d, 0' % va)
    for i in range(n):
        A.E('v_writelane_b32 v%d, s%d, %d' % (va, TRS[i], i))
    A.E('s_mul_i32 s93, s61, 12')
    A.E('s_add_u32 s93, s93, s60')
    A.E('s_lshl_b32 s93, s93, 6')
    A.E('s_add_u32 s93, s93, 0x%x' % TR)
    A.E('v_lshlrev_b32 v%d, 2, v0' % vb)
    A.E('s_mov_b64 exec, 0xffff')
    A.E('buffer_store_dword v%d, v%d, %s, s93 offen' % (va, vb, srd(SWS)))

def attention(A):
    E = A.E
    WT = 's_waitcnt vmcnt(%d)' % (P.depth - 1)
    SLOT = lambda k: 8 + 4 * k
    QB0, QB2, D0, S0 = 136, 140, 144, 160
    PB0, PB1, AT, OA = 76, 84, 96, 136
    Sreg = lambda p: (S0 + p) if p < 8 else (8 + 8 * p)
    kslot = lambda i: 2 * (8 * (i >> 4) + (i & 7)) + ((i >> 3) & 1)
    bufs = [SK, SV, SWS]
    TRS[:] = list(range(79, 90))
    trace(A, 0)
    load_srds(A, bufs)
    srd_consts(A, bufs)
    E('v_and_b32 v1, 15, v0')
    E('v_lshrrev_b32 v2, 4, v0')
    E('v_bfe_u32 v3, v0, 2, 2')
    E('v_lshlrev_b32 v3, 8, v3')
    E('v_lshl_add_u32 v3, v2, 6, v3')
    E('v_and_b32 v6, 3, v0')
    E('v_lshl_add_u32 v3, v6, 4, v3')
    E('v_lshlrev_b32 v4, 4, v0')
    E('v_mov_b32 v5, 0')
    E('s_lshl_b32 s64, s61, 18')
    E('s_lshl_b32 s62, s60, 12')
    E('s_add_u32 s64, s64, s62')
    for k in range(1, 8):
        E('s_add_u32 s%d, s64, %d' % (64 + k, 32768 * k))
    E('s_cmp_lg_u32 s60, 0')
    E('s_cbranch_scc1 a_noinit')
    E('v_lshrrev_b32 v6, 1, v0')
    E('v_cmp_eq_u32 vcc, 2, v6')
    E('v_mov_b32 v7, 0xff800000')
    E('v_cndmask_b32 v136, 0, v7, vcc')
    E('v_mov_b32 v137, v136'); E('v_mov_b32 v138, v136'); E('v_mov_b32 v139, v136')
    E('ds_write_b128 v4, v[136:139]')
    A.label('a_noinit')
    E('s_waitcnt lgkmcnt(0)')
    srd_fix(A, bufs)
    def ldK(i):
        b = SLOT(kslot(i))
        E('buffer_load_dwordx4 %s, v3, %s, s%d offen offset:%d %s' % (v4(b), srd(SK), 64 + (i >> 2), 1024 * (i & 3), P.kv))
    def ldV(i):
        b = SLOT(i & 15)
        E('buffer_load_dwordx4 %s, v4, %s, s%d offen offset:%d %s' % (v4(b), srd(SV), 64 + (i >> 2), 1024 * (i & 3), P.kv))
    for i in range(P.kpre): ldK(i)
    E('s_barrier')
    trace(A, 1)
    E('s_mov_b32 s76, 0x05040100'); E('s_mov_b32 s77, 0x07060302')
    E('s_mov_b32 s78, %s' % f2h(CEXP))
    E('v_and_b32 v6, 7, v1')
    E('v_mul_u32_u24 v144, 272, v6')
    E('v_lshrrev_b32 v7, 3, v1')
    E('v_lshl_add_u32 v7, v2, 2, v7')
    E('v_lshl_add_u32 v144, v7, 4, v144')
    E('v_lshlrev_b32 v145, 2, v6')
    for i in range(P.kpre, 32):
        d = P.d0 if i < P.n0 else P.depth
        if i >= d: E('s_waitcnt vmcnt(%d)' % (d - 1))
        ldK(i)
    trace(A, 2)
    spin(A, 'a_sq', C_Q, 4, 5, 6)
    trace(A, 3)
    E('ds_read_b128 %s, v144 offset:%d' % (v4(QB0), QL))
    E('ds_read_b128 %s, v144 offset:%d' % (v4(QB2), QL + 32))
    E('v_mov_b32 v1, v145')
    E('s_waitcnt lgkmcnt(0)')
    def pair(p):
        sa, sb = SLOT(2 * p), SLOT(2 * p + 1)
        E('v_mfma_f32_16x16x32_bf16 %s, %s, %s, 0' % (v4(D0), v4(sa), v4(QB0)))
        E('v_mfma_f32_16x16x32_bf16 %s, %s, %s, 0' % (v4(D0 + 4), v4(sa), v4(QB2)))
        E('v_mfma_f32_16x16x32_bf16 %s, %s, %s, 0' % (v4(D0 + 8), v4(sb), v4(QB0)))
        E('v_mfma_f32_16x16x32_bf16 %s, %s, %s, 0' % (v4(D0 + 12), v4(sb), v4(QB2)))
        E('v_add_f32 v6, v%d, v%d' % (D0, D0 + 6))
        E('v_add_f32 v7, v%d, v%d' % (D0 + 1, D0 + 7))
        E('v_add_f32_dpp v6, v%d, v%d %s bank_mask:0xc' % (D0 + 9, D0 + 15, IDQ))
        E('v_add_f32_dpp v7, v%d, v%d %s bank_mask:0x3' % (D0 + 8, D0 + 14, IDQ))
        E('v_add_f32_dpp v%d, v7, v6 row_ror:8 %s' % (Sreg(p), FULL))
    for p in range(4): pair(p)
    for k in range(8):
        E(WT)
        ldV(k)
        if k == 0:
            for p in range(4, 9): pair(p)
        else:
            pair(8 + k)
    trace(A, 4)
    S = [Sreg(p) for p in range(16)]
    E('v_max3_f32 v6, v%d, v%d, v%d' % (S[0], S[1], S[2]))
    E('v_max3_f32 v7, v%d, v%d, v%d' % (S[3], S[4], S[5]))
    E('v_max3_f32 v6, v6, v%d, v%d' % (S[6], S[7]))
    E('v_max3_f32 v7, v7, v%d, v%d' % (S[8], S[9]))
    E('v_max3_f32 v6, v6, v%d, v%d' % (S[10], S[11]))
    E('v_max3_f32 v7, v7, v%d, v%d' % (S[12], S[13]))
    E('v_max3_f32 v6, v6, v%d, v%d' % (S[14], S[15]))
    E('v_max_f32 v6, v6, v7')
    E('v_mov_b32 v7, 1')
    E('ds_max_f32 v1, v6 offset:%d' % MX)
    bump(A, C_M, 5, 7)
    for k in range(8, 11):
        E(WT)
        ldV(k)
    spin(A, 'a_sm', C_M, 8, 5, 6, extra=lambda: E('ds_read_b32 v144, v1 offset:%d' % MX))
    trace(A, 5)
    E('v_mul_f32 v144, s78, v144')
    for p in range(16):
        E('v_fma_f32 v%d, v%d, s78, -v144' % (S[p], S[p]))
    for p in range(16):
        E('v_exp_f32 v%d, v%d' % (S[p], S[p]))
    E('v_add_f32 v6, v%d, v%d' % (S[0], S[1]))
    E('v_add_f32 v145, v%d, v%d' % (S[2], S[3]))
    for p in range(4, 16, 2):
        E('v_add_f32 v6, v6, v%d' % S[p])
        E('v_add_f32 v145, v145, v%d' % S[p + 1])
    E('v_add_f32 v6, v6, v145')
    E('ds_add_f32 v1, v6 offset:%d' % LS)
    bump(A, C_L, 5, 7)
    for q in range(4):
        E('v_cvt_pk_bf16_f32 v%d, v%d, v%d' % (PB0 + q, S[2 * q], S[2 * q + 1]))
    for q in range(4):
        E('v_cvt_pk_bf16_f32 v%d, v%d, v%d' % (PB1 + q, S[8 + 2 * q], S[9 + 2 * q]))
    for r in range(32):
        E('v_mov_b32 v%d, 0' % (OA + r))
    for k in range(11, 16):
        E(WT)
        ldV(k)
    E('s_mov_b32 s72, 0')
    trace(A, 6)
    def pv(reg):
        vb = SLOT(8 * reg)
        def perms(e):
            tb = AT + 8 * (e & 1)
            for jj in range(4):
                E('v_perm_b32 v%d, v%d, v%d, s76' % (tb + jj, vb + 4 * (2 * jj + 1) + e, vb + 4 * (2 * jj) + e))
            for jj in range(4):
                E('v_perm_b32 v%d, v%d, v%d, s77' % (tb + 4 + jj, vb + 4 * (2 * jj + 1) + e, vb + 4 * (2 * jj) + e))
        def mf(e):
            tb = AT + 8 * (e & 1)
            for h in range(2):
                d = OA + 4 * (2 * e + h)
                E('v_mfma_f32_16x16x32_bf16 %s, %s, %s, %s' % (v4(d), v4(tb + 4 * h), v4(PB0), v4(d)))
        perms(0)
        for e in range(4):
            if e < 3: perms(e + 1)
            mf(e)
    A.label('a_pv')
    pv(0)
    for k in range(16, 24):
        E(WT)
        ldV(k)
    for q in range(4):
        E('v_mov_b32_dpp v%d, v%d row_ror:8 %s' % (PB0 + q, PB0 + q, FULL))
    pv(1)
    E('s_cmp_eq_u32 s72, 1')
    E('s_cbranch_scc1 a_pvd')
    for k in range(24, 32):
        E(WT)
        ldV(k)
        if k - 24 == P.trigpos:
            bump(A, C_TRIG, 5, 7)
    for q in range(4):
        E('v_mov_b32 v%d, v%d' % (PB0 + q, PB1 + q))
    E('v_mov_b32 v4, 0x7f000000')
    E('s_mov_b32 s72, 1')
    E('s_branch a_pv')
    A.label('a_pvd')
    trace(A, 7)
    E('s_mul_i32 s62, s60, 4224')
    E('v_and_b32 v6, 15, v0')
    E('v_mul_u32_u24 v112, 528, v6')
    E('v_lshl_add_u32 v112, v2, 7, v112')
    E('v_add_u32 v112, s62, v112')
    E('s_mul_i32 s62, s60, 528')
    E('v_lshlrev_b32 v113, 4, v0')
    E('v_add_u32 v113, s62, v113')
    E('v_lshrrev_b32 v114, 2, v0')
    E('v_lshlrev_b32 v114, 12, v114')
    E('v_and_b32 v115, 3, v0')
    E('v_lshl_add_u32 v114, v115, 4, v114')
    E('s_lshr_b32 s62, s61, 6')
    E('s_lshl_b32 s62, s62, 3')
    E('s_add_u32 s62, s62, s60')
    E('s_lshl_b32 s62, s62, 15')
    E('s_and_b32 s63, s61, 63')
    E('s_lshl_b32 s63, s63, 6')
    E('s_add_u32 s62, s62, s63')
    E('s_add_u32 s62, s62, 0x%x' % AP)
    E('s_mov_b32 exec_lo, 0x00ff00ff')
    E('s_mov_b32 exec_hi, 0x00ff00ff')
    for e in range(8):
        E('ds_write_b128 v112, %s offset:%d' % (v4(OA + 4 * e), OL + 16 * e))
    bump(A, C_O, 5, 7)
    spin(A, 'a_so', C_O, 8, 5, 6)
    trace(A, 8)
    E('s_mov_b32 exec_hi, 0')
    R = 72
    for v in range(8):
        E('ds_read_b128 %s, v113 offset:%d' % (v4(R + 4 * v), OL + 4224 * v))
    E('s_waitcnt lgkmcnt(4)')
    for r in range(4):
        E('v_add_f32 v%d, v%d, v%d' % (R + r, R + r, R + 4 + r))
        E('v_add_f32 v%d, v%d, v%d' % (R + 8 + r, R + 8 + r, R + 12 + r))
    E('s_waitcnt lgkmcnt(0)')
    for r in range(4):
        E('v_add_f32 v%d, v%d, v%d' % (R + 16 + r, R + 16 + r, R + 20 + r))
        E('v_add_f32 v%d, v%d, v%d' % (R + 24 + r, R + 24 + r, R + 28 + r))
    for r in range(4):
        E('v_add_f32 v%d, v%d, v%d' % (R + r, R + r, R + 8 + r))
        E('v_add_f32 v%d, v%d, v%d' % (R + 16 + r, R + 16 + r, R + 24 + r))
    for r in range(4):
        E('v_add_f32 v%d, v%d, v%d' % (R + r, R + r, R + 16 + r))
    for r in range(4):
        E('v_min_u32 v%d, -2, v%d' % (R + r, R + r))
    E('buffer_store_dwordx4 %s, v114, %s, s62 offen sc1' % (v4(R), srd(SWS)))
    trace(A, 9)
    trace_dump(A, 10, 116, 117)
    E('s_endpgm')

def service(A):
    E = A.E
    A.hist = []; A.vm = []
    allb = [SX, SWQ, SWS, SDBG, SWG, SWU, SGW, SWR, SWD, SWO, SOUT]
    XC, SC, WQ, WG, WU, SEL, DD, CQ, M1 = 12, 16, 40, 72, 104, 136, 144, 156, 160
    XC2 = 104
    XF, GG, C2, OMG = 164, 165, 166, 167
    TRS[:] = [96, 97, 98, 99, 100, 101, 12, 13, 14, 15, 16, 17, 18, 19]
    trace(A, 0)
    load_srds(A, allb)
    if P.prio: E('s_setprio %d' % P.prio)
    srd_consts(A, allb)
    E('v_and_b32 v1, 15, v0')
    E('v_lshrrev_b32 v2, 4, v0')
    E('s_sub_u32 s62, s60, 8')
    E('s_lshr_b32 s63, s61, 6')
    E('s_and_b32 s64, s61, 63')
    E('v_lshrrev_b32 v3, 3, v1')
    E('v_lshlrev_b32 v3, 5, v3')
    E('v_lshl_add_u32 v3, v2, 3, v3')
    E('v_and_b32 v11, 7, v1')
    E('v_lshlrev_b32 v11, 4, v11')
    E('v_lshlrev_b32 v8, 4, v0')
    E('v_mov_b32 v9, 0')
    E('v_mov_b32 v10, 1')
    E('s_lshl_b32 s69, s61, 12')
    E('s_mul_i32 s3, s64, 4682')
    E('s_lshr_b32 s3, s3, 16')
    E('s_mul_i32 s4, s3, 14')
    E('s_sub_u32 s4, s64, s4')
    E('s_mul_i32 s5, s63, 28672')
    E('s_mul_i32 s6, s3, 7168')
    E('s_add_u32 s5, s5, s6')
    E('s_lshl_b32 s6, s4, 8')
    E('s_add_u32 s5, s5, s6')
    E('s_add_u32 s5, s5, 0x%x' % GU)
    E('s_lshl_b32 s6, s63, 6')
    E('s_cmp_ge_u32 s62, 2')
    E('s_cbranch_scc1 s_ctl')
    E('s_lshr_b32 s65, s64, 4')
    E('s_lshl_b32 s65, s65, 8')
    E('s_lshl_b32 s66, s62, 7')
    E('s_add_u32 s65, s65, s66')
    E('v_add_u32 v4, s65, v3')
    E('v_lshlrev_b32 v6, 1, v4')
    E('s_lshl_b32 s66, s63, 11')
    E('s_and_b32 s67, s64, 15')
    E('s_lshl_b32 s67, s67, 7')
    E('s_add_u32 s66, s66, s67')
    E('v_lshlrev_b32 v4, 13, v4')
    E('v_add3_u32 v4, v4, v11, s66')
    E('v_add_u32 v5, 0x80000, v4')
    for i in range(1, 8):
        E('s_mov_b32 s%d, %d' % (69 + i, 8192 * i))
    E('s_waitcnt lgkmcnt(0)')
    srd_fix(A, allb)
    E('buffer_load_dwordx4 %s, v6, %s, 0 offen' % (v4(XC), srd(SX)))
    E('buffer_load_dwordx4 %s, v6, %s, 0 offen offset:128' % (v4(XC2), srd(SX)))
    for i in range(16):
        E('buffer_load_dwordx4 %s, v%d, %s, %s offen %s' % (v4(WQ + 4 * i), 4 + (i >> 3), srd(SWQ), ('s%d' % (69 + (i & 7))) if i & 7 else '0', P.wf))
    E('s_barrier')
    def selconst():
        E('v_and_b32 v6, 1, v1')
        E('v_lshlrev_b32 v6, 4, v6')
        E('v_lshlrev_b32_e64 v6, v6, 1')
        E('v_bfe_u32 v7, v1, 1, 2')
        for q in range(4):
            E('v_cmp_eq_u32 vcc, %d, v7' % q)
            E('v_cndmask_b32 v%d, 0, v6, vcc' % (CQ + q))
    def accaddr():
        E('v_and_b32 v6, 1, v2')
        E('v_lshlrev_b32 v6, 7, v6')
        E('v_and_b32 v7, 7, v1')
        E('v_lshl_add_u32 v6, v7, 2, v6')
    selconst()
    accaddr()
    E('s_lshl_b32 s66, s61, 8')
    for i in range(16):
        if i % 2 == 0: E('s_waitcnt vmcnt(%d)' % (14 - i))
        if i == 14: trace(A, 1)
        sb = SEL + 4 * (i & 1)
        xc = (XC if i < 8 else XC2) + ((i & 7) >> 1)
        for q in range(4):
            E('v_mul_u32_u24_sdwa v%d, v%d, v%d dst_sel:DWORD dst_unused:UNUSED_PAD src0_sel:WORD_%d src1_sel:DWORD'
              % (sb + q, xc, CQ + q, i & 1))
        d = DD + 4 * (i & 1)
        E('v_mfma_f32_16x16x32_bf16 %s, %s, %s, %s' % (v4(d), v4(WQ + 4 * i), v4(sb), '0' if i < 2 else v4(d)))
    for r in range(4):
        E('v_add_f32 v%d, v%d, v%d' % (DD + r, DD + r, DD + 4 + r))
    E('s_mov_b32 exec_lo, 0x00ff00ff')
    E('s_mov_b32 exec_hi, 0xff00ff00')
    for r in range(4):
        E('ds_add_f32 v6, v%d offset:%d' % (DD + r, P1 + 32 * r))
    E('s_mov_b64 exec, 1')
    E('ds_add_rtn_u32 v7, v9, v10 offset:%d' % C_P1)
    E('s_mov_b64 exec, -1')
    E('s_waitcnt lgkmcnt(0)')
    E('v_readfirstlane_b32 s87, v7')
    E('s_cmp_lg_u32 s87, 1')
    E('s_cbranch_scc1 s_join')
    spin(A, 's_s0', C_S1, 2, 9, 6, extra=lambda: E('ds_read_b128 %s, v8 offset:%d' % (v4(WQ), P1)))
    for r in range(4):
        E('v_min_u32 v%d, -2, v%d' % (WQ + r, WQ + r))
    E('s_mov_b64 exec, 0xffff')
    E('buffer_store_dwordx4 %s, v8, %s, s66 offen sc1' % (v4(WQ), srd(SWS)))
    bump(A, C_S1, 9, 10)
    E('s_branch s_join')
    A.label('s_ctl')
    A.hist = []
    for r in range(4): E('v_mov_b32 v%d, -1' % (M1 + r))
    E('s_add_u32 s65, s69, 0x%x' % AP)
    E('s_add_u32 s66, s69, 0x%x' % ZI)
    E('s_lshl_b32 s67, s61, 6')
    E('s_add_u32 s67, s67, 0x%x' % ML)
    E('s_lshl_b32 s70, s63, 14')
    E('s_add_u32 s71, s70, 4096')
    E('s_add_u32 s72, s70, 8192')
    E('s_add_u32 s73, s70, 12288')
    E('v_mul_u32_u24 v7, 3584, v2')
    E('v_lshl_add_u32 v7, v1, 4, v7')
    E('s_waitcnt lgkmcnt(0)')
    srd_fix(A, allb)
    E('s_cmp_eq_u32 s62, 2')
    E('s_cbranch_scc1 s_c2')
    for i in range(4):
        E('buffer_store_dwordx4 %s, v8, %s, s65 offen offset:%d sc1' % (v4(M1), srd(SWS), 1024 * i))
    E('s_mov_b64 exec, 15')
    E('buffer_store_dwordx4 %s, v8, %s, s67 offen sc1' % (v4(M1), srd(SWS)))
    E('s_cmp_ge_u32 s64, 56')
    E('s_cbranch_scc1 s_c3n')
    E('s_mov_b32 exec_lo, -1')
    E('buffer_store_dwordx4 %s, v7, %s, s5 offen sc1' % (v4(M1), srd(SWS)))
    A.label('s_c3n')
    E('s_mov_b64 exec, -1')
    for i in range(4):
        E('buffer_store_dwordx4 %s, v8, %s, s66 offen offset:%d sc1' % (v4(M1), srd(SWS), 1024 * i))
    E('s_barrier')
    selconst()
    E('s_waitcnt vmcnt(0)')
    trace(A, 1)
    bump(A, C_S1, 9, 10)
    E('s_branch s_join')
    A.label('s_c2')
    A.hist = []
    E('s_cmp_lg_u32 s64, %d' % P.rs)
    E('s_cbranch_scc1 s_c2n')
    for i in range(16):
        E('buffer_store_dwordx4 %s, v8, %s, s%d offen offset:%d sc1' % (v4(M1), srd(SWS), 70 + (i >> 2), 1024 * (i & 3)))
    E('s_mov_b64 exec, 1')
    E('s_waitcnt vmcnt(0)')
    E('buffer_store_dword v10, v9, %s, s6 offen sc1' % srd(SDBG))
    E('s_barrier')
    E('s_branch s_pf_d')
    A.label('s_c2n')
    E('s_barrier')
    E('s_mov_b64 exec, 1')
    A.label('s_pf')
    E('buffer_load_dword v6, v9, %s, s6 offen sc1' % srd(SDBG))
    E('s_waitcnt vmcnt(0)')
    E('v_cmp_eq_u32 vcc, 0, v6')
    E('s_cbranch_vccz s_pf_d')
    E('s_sub_u32 s%d, s%d, 1' % (SGC, SGC))
    E('s_cbranch_scc0 s_pf')
    E('s_endpgm')
    A.label('s_pf_d')
    trace(A, 1)
    bump(A, C_S1, 9, 10)
    selconst()
    A.label('s_join')
    A.hist = []
    trace(A, 2)
    E('s_lshl_b32 s70, s63, 14')
    E('s_lshl_b32 s71, s62, 10')
    E('s_add_u32 s68, s69, s71')
    E('s_add_u32 s68, s68, 0x%x' % AP)
    E('s_add_u32 s70, s70, s71')
    E('s_add_u32 s71, s70, 4096'); E('s_add_u32 s72, s70, 8192'); E('s_add_u32 s73, s70, 12288')
    E('v_lshrrev_b32 v6, 5, v0')
    E('v_mul_u32_u24 v6, 272, v6')
    E('v_and_b32 v7, 31, v0')
    E('v_lshl_add_u32 v4, v7, 3, v6')
    E('s_mul_i32 s76, s62, 544')
    E('v_add_u32 v4, s76, v4')
    E('s_lshl_b32 s65, s3, 8')
    E('s_lshl_b32 s66, s62, 6')
    E('s_add_u32 s65, s65, s66')
    E('v_add_u32 v3, s65, v3')
    E('s_mul_i32 s66, s63, 14')
    E('s_add_u32 s66, s66, s4')
    E('s_lshl_b32 s66, s66, 7')
    E('v_mul_u32_u24 v5, 0x1c00, v3')
    E('v_add3_u32 v5, v5, v11, s66')
    E('v_lshlrev_b32 v3, 1, v3')
    for i in range(1, 8):
        E('s_mov_b32 s%d, %d' % (76 + i, 7168 * i))
    spin(A, 's_s1', C_S1, 3, 9, 6)
    trace(A, 3)
    poll(A, 's_pq', ['buffer_load_dwordx4 %s, v8, %s, s%d offen sc1' % (v4(40 + 4 * r), srd(SWS), 70 + r) for r in range(4)],
         range(40, 56), 6)
    for r in range(4):
        E('v_add_f32 v%d, v%d, v%d' % (40 + r, 40 + r, 44 + r))
        E('v_add_f32 v%d, v%d, v%d' % (48 + r, 48 + r, 52 + r))
    for r in range(4):
        E('v_add_f32 v%d, v%d, v%d' % (40 + r, 40 + r, 48 + r))
    E('v_cvt_pk_bf16_f32 v40, v40, v41')
    E('v_cvt_pk_bf16_f32 v41, v42, v43')
    E('ds_write_b64 v4, v[40:41] offset:%d' % QL)
    bump(A, C_Q, 9, 10)
    trace(A, 4)
    if P.prio2 != P.prio: E('s_setprio %d' % P.prio2)
    E('s_cmp_lg_u32 s64, %d' % P.rs)
    E('s_cbranch_scc1 s_nf2')
    E('s_cmp_lg_u32 s62, 2')
    E('s_cbranch_scc1 s_nf2')
    spin(A, 's_f2', C_Q, 4, 9, 6)
    E('s_mov_b64 exec, 1')
    E('buffer_store_dword v10, v9, %s, s6 offen offset:4 sc1' % srd(SDBG))
    E('s_mov_b64 exec, -1')
    A.label('s_nf2')
    E('s_cmp_ge_u32 s64, 56')
    E('s_cbranch_scc1 s_nogu')
    E('buffer_load_dwordx4 %s, v3, %s, 0 offen' % (v4(XC), srd(SX)))
    for i in range(8):
        E('buffer_load_dwordx4 %s, v5, %s, %s offen %s' % (v4(WG + 4 * i), srd(SWG), ('s%d' % (76 + i)) if i else '0', P.wf))
    for i in range(8):
        E('buffer_load_dwordx4 %s, v5, %s, %s offen %s' % (v4(WU + 4 * i), srd(SWU), ('s%d' % (76 + i)) if i else '0', P.wf))
    A.label('s_nogu')
    E('v_lshlrev_b32 v7, 5, v0')
    for i, b in enumerate([SX, SGW, SWR]):
        E('buffer_load_dwordx4 %s, v7, %s, 0 offen' % (v4(SC + 8 * i), srd(b)))
        E('buffer_load_dwordx4 %s, v7, %s, 0 offen offset:16' % (v4(SC + 8 * i + 4), srd(b)))
    E('s_lshr_b32 s85, s61, 5')
    E('s_lshl_b32 s85, s85, 8')
    E('s_bfe_u32 s86, s61, 0x20003')
    E('s_lshl_b32 s86, s86, 6')
    E('s_add_u32 s85, s85, s86')
    E('s_and_b32 s86, s61, 7')
    E('s_lshl_b32 s86, s86, 1')
    E('s_add_u32 s85, s85, s86')
    E('v_lshlrev_b32 v3, 4, v2')
    E('buffer_load_ushort v%d, v3, %s, s85 offen' % (XF, srd(SX)))
    E('s_cmp_ge_u32 s64, 56')
    E('s_cbranch_scc1 s_nogu2')
    accaddr()
    E('v_mul_u32_u24 v4, 3584, v2')
    E('v_lshl_add_u32 v4, v1, 4, v4')
    E('s_waitcnt vmcnt(7)')
    for i in range(8):
        sb = SEL + 4 * (i & 1)
        for q in range(4):
            E('v_mul_u32_u24_sdwa v%d, v%d, v%d dst_sel:DWORD dst_unused:UNUSED_PAD src0_sel:WORD_%d src1_sel:DWORD'
              % (sb + q, XC + (i >> 1), CQ + q, i & 1))
        for mat, wb in enumerate([WG, WU]):
            d = DD + 4 * mat
            E('v_mfma_f32_16x16x32_bf16 %s, %s, %s, %s' % (v4(d), v4(wb + 4 * i), v4(sb), '0' if i == 0 else v4(d)))
    E('s_mov_b32 exec_lo, 0x00ff00ff')
    E('s_mov_b32 exec_hi, 0xff00ff00')
    for mat in range(2):
        for r in range(4):
            E('ds_add_f32 v6, v%d offset:%d' % (DD + 4 * mat + r, P1 + 256 * (mat + 1) + 32 * r))
    E('s_mov_b64 exec, 1')
    E('ds_add_rtn_u32 v7, v9, v10 offset:%d' % C_P2)
    E('s_mov_b64 exec, -1')
    E('s_waitcnt lgkmcnt(0)')
    E('v_readfirstlane_b32 s87, v7')
    E('s_cmp_lg_u32 s87, 3')
    E('s_cbranch_scc1 s_nogu2')
    E('s_mov_b32 exec_hi, 0')
    E('ds_read_b128 %s, v8 offset:%d' % (v4(WQ), P1 + 256))
    E('s_waitcnt lgkmcnt(0)')
    for r in range(4):
        E('v_min_u32 v%d, -2, v%d' % (WQ + r, WQ + r))
    E('buffer_store_dwordx4 %s, v4, %s, s5 offen sc1' % (v4(WQ), srd(SWS)))
    E('s_mov_b64 exec, -1')
    A.label('s_nogu2')
    A.hist = []
    E('s_waitcnt vmcnt(0)')
    trace(A, 5)
    E('v_mov_b32 v%d, 0' % GG); E('v_mov_b32 v%d, 0' % C2)
    for e in range(8):
        E('v_dot2c_f32_bf16 v%d, v%d, v%d' % (GG, SC + e, SC + 8 + e))
    for e in range(8):
        E('v_dot2c_f32_bf16 v%d, v%d, v%d' % (C2, SC + e, SC + 16 + e))
    xlane_multi(A, 'v_add_f32', [GG, C2], [0, 1, 2, 3])
    xlane(A, 'v_add_f32', GG, 6, [4, 5])
    xlane(A, 'v_add_f32', C2, 7, [4, 5])
    bf16r(A, GG); bf16r(A, C2)
    sigmoid(A, GG, GG); bf16r(A, GG)
    sigmoid(A, C2, C2); bf16r(A, C2)
    E('v_sub_f32 v%d, 1.0, v%d' % (OMG, GG)); bf16r(A, OMG)
    E('v_mul_f32 v%d, v%d, v%d' % (C2, C2, OMG))
    E('v_lshlrev_b32 v%d, 16, v%d' % (XF, XF))
    E('v_mul_f32 v%d, v%d, v%d' % (XF, XF, OMG))
    E('v_and_b32 v6, 12, v1')
    E('v_add_u32 v6, v6, v2')
    E('v_cmp_gt_u32 s[88:89], 14, v6')
    E('v_min_u32 v6, 13, v6')
    E('v_and_b32 v7, 3, v1')
    E('v_lshlrev_b32 v36, 6, v7')
    E('v_mul_u32_u24 v7, 7168, v7')
    E('v_lshl_add_u32 v15, v6, 2, v7')
    E('s_mul_i32 s70, s63, 28672')
    E('s_mul_i32 s71, s64, 56')
    E('s_add_u32 s70, s70, s71')
    E('s_add_u32 s70, s70, 0x%x' % GU)
    E('s_add_u32 s71, s70, 3584')
    E('v_lshlrev_b32 v6, 11, v2')
    E('v_lshl_add_u32 v12, v1, 4, v6')
    E('v_mov_b32 v7, 0x7f000000')
    E('v_cmp_gt_u32 vcc, 2, v2')
    E('v_cndmask_b32 v13, v7, v12, vcc')
    E('s_mul_i32 s76, s61, 28672')
    E('s_lshl_b32 s77, s62, 9')
    E('s_add_u32 s76, s76, s77')
    E('s_add_u32 s78, s76, 8192'); E('s_add_u32 s79, s76, 16384'); E('s_add_u32 s80, s76, 24576')
    E('s_lshr_b32 s81, s61, 3')
    E('s_lshl_b32 s81, s81, 7')
    E('s_bfe_u32 s82, s61, 0x20001')
    E('s_lshl_b32 s82, s82, 5')
    E('s_add_u32 s81, s81, s82')
    E('s_and_b32 s82, s61, 1')
    E('s_lshl_b32 s82, s82, 2')
    E('s_add_u32 s81, s81, s82')
    E('s_lshl_b32 s81, s81, 11')
    E('s_add_u32 s81, s81, s77')
    E('s_add_u32 s82, s81, 16384'); E('s_add_u32 s83, s81, 32768'); E('s_add_u32 s84, s81, 49152')
    WD, WO, HS, OS = 40, 72, 104, 120
    wdso = ['s76', 's78', 's79', 's80']
    woso = ['s81', 's82', 's83', 's84']
    def ld_wd():
        for rg in range(4):
            for c2 in range(2):
                E('buffer_load_dwordx4 %s, v%d, %s, %s offen offset:%d %s' % (v4(WD + 8 * rg + 4 * c2), 13 if rg == 3 else 12, srd(SWD), wdso[rg], 256 * c2, P.wf))
    def ld_wo():
        for rg in range(4):
            for c2 in range(2):
                E('buffer_load_dwordx4 %s, v12, %s, %s offen offset:%d %s' % (v4(WO + 8 * rg + 4 * c2), srd(SWO), woso[rg], 256 * c2, P.wf))
    ZL, ZH = 144, 148
    E('s_lshl_b32 s65, s63, 12')
    E('s_lshl_b32 s66, s64, 3')
    E('s_add_u32 s65, s65, s66')
    E('s_add_u32 s65, s65, 0x%x' % ML)
    E('s_lshr_b32 s66, s61, 3')
    E('s_lshl_b32 s66, s66, 9')
    E('s_add_u32 s66, s66, 0x%x' % ML)
    for i in range(4):
        E('s_add_u32 s%d, s62, %d' % (72 + i, i))
        E('s_and_b32 s%d, s%d, 3' % (72 + i, 72 + i))
        E('s_lshl_b32 s%d, s%d, 7' % (72 + i, 72 + i))
        E('s_add_u32 s%d, s%d, s66' % (72 + i, 72 + i))
    E('v_lshlrev_b32 v4, 2, v0')
    E('v_lshlrev_b32 v5, 9, v0')
    E('v_lshlrev_b32 v14, 3, v1')
    E('s_mov_b32 s86, %s' % f2h(CEXP))
    E('s_cmp_lg_u32 s62, 0')
    E('s_cbranch_scc1 s_nml')
    spin(A, 's_sl', C_L, 8, 9, 6)
    E('s_mov_b64 exec, 0xff')
    E('ds_read2_b32 v[16:17], v4 offset0:%d offset1:%d' % (MX // 4, LS // 4))
    E('s_waitcnt lgkmcnt(0)')
    E('v_min_u32 v16, -2, v16')
    E('v_min_u32 v17, -2, v17')
    E('buffer_store_dwordx2 v[16:17], v5, %s, s65 offen sc1' % srd(SWS))
    E('s_mov_b64 exec, -1')
    A.label('s_nml')
    A.hist = []
    trace(A, 6)
    E('v_lshrrev_b32 v6, 3, v1')
    E('v_lshlrev_b32 v6, 2, v6')
    E('v_add_u32 v6, v6, v2')
    E('v_and_b32 v7, 7, v1')
    E('v_lshl_add_u32 v6, v6, 3, v7')
    E('v_lshlrev_b32 v4, 12, v6')
    E('s_lshl_b32 s67, s62, 18')
    E('s_lshl_b32 s66, s61, 4')
    E('s_add_u32 s67, s67, s66')
    E('s_add_u32 s67, s67, 0x%x' % ZI)
    spin(A, 's_st', C_TRIG, P.trign, 9, 6)
    trace(A, 7)
    if P.prio3 != P.prio2: E('s_setprio %d' % P.prio3)
    small = ['buffer_load_dwordx2 %s, v14, %s, s%d offen sc1' % (v2(16 + 2 * i), srd(SWS), 72 + i) for i in range(4)]
    small += ['buffer_load_dword v24, v15, %s, s70 offen sc1' % srd(SWS), 'buffer_load_dword v25, v15, %s, s71 offen sc1' % srd(SWS)]
    small += ['buffer_load_dword v26, v36, %s, 0 offen offset:4 sc1' % srd(SDBG)]
    for l in small: E(l)
    ld_wd()
    ld_wo()
    E('s_waitcnt vmcnt(16)')
    E('v_add_u32 v26, -1, v26')
    E('v_max3_u32 v6, v16, v17, v18')
    E('v_max3_u32 v6, v6, v19, v20')
    E('v_max3_u32 v6, v6, v21, v22')
    E('v_max3_u32 v6, v6, v23, v24')
    E('v_max3_u32 v6, v6, v25, v26')
    E('v_cmp_eq_u32 vcc, -1, v6')
    E('s_cbranch_vccz s_pml_d')
    poll(A, 's_pml', small, range(16, 27), 6, pre=lambda: E('v_add_u32 v26, -1, v26'))
    A.hist = []
    xlane_multi(A, 'v_add_f32', [24, 25], [0, 1])
    bf16r(A, 24); bf16r(A, 25)
    sigmoid(A, 26, 24)
    E('v_mul_f32 v26, v26, v24')
    bf16r(A, 26)
    E('v_mul_f32 v26, v26, v25')
    E('v_cvt_pk_bf16_f32 v26, v26, v26')
    E('v_cndmask_b32 v26, 0, v26, s[88:89]')
    for rg in range(4):
        E('v_mov_b32_dpp v%d, v26 row_newbcast:%d %s' % (28 + rg, 4 * rg, FULL))
    for rg in range(4):
        for q in range(4):
            E('v_mul_u32_u24_sdwa v%d, v%d, v%d dst_sel:DWORD dst_unused:UNUSED_PAD src0_sel:WORD_0 src1_sel:DWORD'
              % (HS + 4 * rg + q, 28 + rg, CQ + q))
    E('v_max3_f32 v6, v16, v18, v20')
    E('v_max_f32 v6, v6, v22')
    xlane(A, 'v_max_f32', 6, 7, [0, 1, 2, 3])
    for i in range(4):
        E('v_sub_f32 v%d, v%d, v6' % (32 + i, 16 + 2 * i))
    for i in range(4):
        E('v_mul_f32 v%d, s86, v%d' % (32 + i, 32 + i))
    for i in range(4):
        E('v_exp_f32 v%d, v%d' % (32 + i, 32 + i))
    E('v_mul_f32 v6, v32, v17')
    for i in range(1, 4):
        E('v_fmac_f32 v6, v%d, v%d' % (32 + i, 17 + 2 * i))
    xlane(A, 'v_add_f32', 6, 7, [0, 1, 2, 3])
    E('v_rcp_f32 v6, v6')
    E('v_mul_f32 v11, v32, v6')
    E('v_lshlrev_b32 v14, 6, v1')
    E('v_lshl_add_u32 v14, v2, 4, v14')
    E('s_lshl_b32 s70, s62, 6')
    E('v_add_u32 v15, s70, v3')
    E('s_waitcnt vmcnt(8)')
    for rg in range(4):
        for c2 in range(2):
            d = ZL + 4 * c2
            E('v_mfma_f32_16x16x32_bf16 %s, %s, %s, %s' % (v4(d), v4(WD + 8 * rg + 4 * c2), v4(HS + 4 * rg), '0' if rg == 0 else v4(d)))
    for r in range(4):
        E('v_mul_f32 v%d, v%d, v%d' % (ZL + r, ZL + r, C2))
    for r in range(4):
        E('v_mul_f32_dpp v%d, v%d, v%d %s bank_mask:0xc' % (ZL + r, ZH + r, C2, IDQ))
    spin(A, 's_so', C_O, 8, 9, 6)
    trace(A, 8)
    poll(A, 's_pap', ['buffer_load_dwordx4 v[16:19], v14, %s, s68 offen sc1' % srd(SWS)], range(16, 20), 6)
    trace(A, 9)
    for r in range(4):
        E('v_mul_f32 v%d, v%d, v11' % (16 + r, 16 + r))
    xlane_multi(A, 'v_add_f32', [16, 17, 18, 19], [0, 1, 2, 3])
    E('s_mov_b32 exec_lo, 0x00010001')
    E('s_mov_b32 exec_hi, 0x00010001')
    E('ds_write_b128 v15, v[16:19] offset:%d' % CB)
    bump(A, C_C, 9, 10)
    spin(A, 's_sc', C_C, 4, 9, 6)
    for jj in range(4):
        E('ds_read_b128 %s, v3 offset:%d' % (v4(16 + 4 * jj), CB + 64 * jj))
    E('s_waitcnt lgkmcnt(0)')
    for r in range(4):
        E('v_add_f32 v%d, v%d, v%d' % (16 + r, 16 + r, 20 + r))
        E('v_add_f32 v%d, v%d, v%d' % (24 + r, 24 + r, 28 + r))
    for r in range(4):
        E('v_add_f32 v%d, v%d, v%d' % (16 + r, 16 + r, 24 + r))
    E('v_cvt_pk_bf16_f32 v16, v16, v17')
    E('v_cvt_pk_bf16_f32 v17, v18, v19')
    DL, DH = 148, 152
    for rg in range(4):
        for q in range(4):
            E('v_mul_u32_u24_sdwa v%d, v%d, v%d dst_sel:DWORD dst_unused:UNUSED_PAD src0_sel:WORD_%d src1_sel:DWORD'
              % (OS + 4 * rg + q, 16 + (rg >> 1), CQ + q, rg & 1))
        for c2 in range(2):
            d = DL + 4 * c2
            E('v_mfma_f32_16x16x32_bf16 %s, %s, %s, %s' % (v4(d), v4(WO + 8 * rg + 4 * c2), v4(OS + 4 * rg), '0' if rg == 0 else v4(d)))
    for r in range(4):
        E('v_fmac_f32_dpp v%d, v%d, v%d %s bank_mask:0x3' % (ZL + r, DL + r, GG, IDQ))
    for r in range(4):
        E('v_fmac_f32_dpp v%d, v%d, v%d %s bank_mask:0xc' % (ZL + r, DH + r, GG, IDQ))
    for r in range(4):
        E('v_min_u32 v%d, -2, v%d' % (ZL + r, ZL + r))
    E('buffer_store_dwordx4 %s, v4, %s, s67 offen sc1' % (v4(ZL), srd(SWS)))
    trace(A, 10)
    E('s_cmp_lg_u32 s62, 3')
    E('s_cbranch_scc1 k_fin')
    E('s_add_u32 s69, s69, 0x%x' % ZI)
    poll(A, 's_pz', ['buffer_load_dwordx4 %s, v8, %s, s69 offen offset:%d sc1' % (v4(16 + 4 * i), srd(SWS), 1024 * i) for i in range(4)],
         range(16, 32), 6)
    trace(A, 11)
    for q in range(4):
        E('v_add_f32 v%d, v%d, v%d' % (16 + q, 16 + q, 20 + q))
        E('v_add_f32 v%d, v%d, v%d' % (24 + q, 24 + q, 28 + q))
    for q in range(4):
        E('v_add_f32 v%d, v%d, v%d' % (16 + q, 16 + q, 24 + q))
    E('v_permlane32_swap_b32 v16, v18'); E('v_permlane32_swap_b32 v17, v19')
    E('v_add_f32 v16, v16, v18'); E('v_add_f32 v17, v17, v19')
    E('v_permlane16_swap_b32 v16, v17')
    E('v_add_f32 v16, v16, v17')
    xlane(A, 'v_add_f32', 16, 7, [0, 1, 2, 3])
    E('v_add_f32 v16, v16, v%d' % XF)
    E('v_cvt_pk_bf16_f32 v16, v16, v16')
    E('s_mov_b32 exec_lo, 0x00010001')
    E('s_mov_b32 exec_hi, 0x00010001')
    E('buffer_store_short v16, v3, %s, s85 offen' % srd(SOUT))
    trace(A, 12)
    A.label('k_fin')
    trace_dump(A, 13, 40, 41)

def main(out):
    A = Asm()
    hdr = ['; generated by gen/gen_pers3.py (own generator)',
           '; @launch grid=(256,1,1) block=(768,1,1) lds=%d' % LDS_BYTES,
           '.amdgcn_target "amdgcn-amd-amdhsa--gfx950"', '.text', '.globl ' + KN, '.p2align 8', '.type %s,@function' % KN]
    for h in hdr: A.raw(h)
    A.label(KN)
    E = A.E
    E('s_cmp_ge_u32 s2, 256')
    E('s_cbranch_scc1 k_end')
    E('v_lshrrev_b32 v1, 6, v0')
    E('v_and_b32 v0, 63, v0')
    E('v_readfirstlane_b32 s60, v1')
    E('s_and_b32 s61, s2, 7')
    E('s_lshl_b32 s61, s61, 5')
    E('s_lshr_b32 s62, s2, 3')
    E('s_add_u32 s61, s61, s62')
    E('s_mov_b32 s%d, 0x400000' % SCNT)
    E('s_mov_b32 s%d, 0x20000' % SGC)
    E('s_cmp_ge_u32 s60, 8')
    E('s_cbranch_scc1 k_svc')
    attention(A)
    A.label('k_svc')
    service(A)
    A.label('k_end')
    E('s_endpgm')
    nv = (A.maxv + 7) // 8 * 8
    assert nv <= 168, nv
    A.raw('.section .rodata,"a"')
    A.raw('.p2align 6')
    A.raw('.amdhsa_kernel %s' % KN)
    A.raw('  .amdhsa_next_free_vgpr %d' % nv)
    A.raw('  .amdhsa_next_free_sgpr %d' % max(A.maxs, 16))
    A.raw('  .amdhsa_accum_offset %d' % nv)
    A.raw('  .amdhsa_group_segment_fixed_size 0')
    A.raw('  .amdhsa_kernarg_size 112')
    A.raw('  .amdhsa_user_sgpr_count 2')
    A.raw('  .amdhsa_user_sgpr_kernarg_segment_ptr 1')
    A.raw('  .amdhsa_system_sgpr_workgroup_id_x 1')
    A.raw('.end_amdhsa_kernel')
    open(out, 'w').write(A.text())

if __name__ == '__main__':
    out = sys.argv[1]
    for a in sys.argv[2:]:
        k, v = a.split('=', 1)
        cur = getattr(P, k)
        setattr(P, k, int(v) if isinstance(cur, int) else v.replace('+', ' '))
    main(out)
```
